```python
import torch

def _softmax(x, axis=-1):
    return torch.softmax(x, dim=axis)
def _gelu(x):
    return torch.nn.functional.gelu(x, approximate="tanh")
def _silu(x):
    return torch.nn.functional.silu(x)
def _sigmoid(x):
    return torch.sigmoid(x)
def _layernorm(x, axis=-1, eps=1e-5):
    m = x.mean(dim=axis, keepdim=True)
    v = x.var(dim=axis, keepdim=True, unbiased=False)
    return (x - m) / torch.sqrt(v + eps)
def _scatter_add(tgt, idx, src, axis=0):
    return tgt.clone().index_add_(axis, idx, src)
def _segment_sum(src, seg, n):
    out = torch.zeros((n,) + src.shape[1:], dtype=src.dtype)
    return out.index_add_(0, seg, src)
def _pad(x, pw):
    flat = tuple(v for pair in reversed(pw) for v in pair)
    return torch.nn.functional.pad(x, flat)

kernel_name = 'standalone__softmax_full_bidir__decode'

def setup_inputs():

    _w = (lambda a: (lambda t: t.to(torch.bfloat16) if t.is_floating_point() else t)(torch.as_tensor(a)))
    B, H, Sq, Skv, Dh = 2, 32, 1, 16384, 128
    return {
        "q": _w((lambda *s: torch.randn(*s, dtype=torch.bfloat16) * 0.8)(B, H, Sq, Dh)),
        "k": _w((lambda *s: torch.randn(*s, dtype=torch.bfloat16) * 0.8)(B, H, Skv, Dh)),
        "v": _w((lambda *s: torch.randn(*s, dtype=torch.bfloat16) * 0.05)(B, H, Skv, Dh)),
    }

def reference(q, k, v):
    scale = q.shape[-1] ** -0.5
    scores = torch.einsum('bhqd,bhkd->bhqk', q, k) * scale
    attn = _softmax(scores, axis=-1)
    return torch.einsum('bhqk,bhkd->bhqd', attn, v)
```

```python
import sys, re, argparse

NAME = "standalone__softmax_full_bidir__decode"

HEADER = """; Kernarg layout for this problem (48 bytes, ptrs only, base s[0:1]):
"""

class E:
    def __init__(self):
        self.lines = []
    def __call__(self, s):
        self.lines.append("    " + s)
    def label(self, s):
        self.lines.append(s + ":")
    def c(self, s):
        self.lines.append("    ; " + s)
    def text(self):
        return "\n".join(self.lines) + "\n"

def vr(a, n=1):
    return f"v{a}" if n == 1 else f"v[{a}:{a+n-1}]"

def gen(p):
    NW = p.nw
    NS = p.ns
    CH = p.ch
    G = CH // 4
    flags = p.flags
    NWG = 64 * NS
    keys_wg = 16384 // NS
    bytes_wg = keys_wg * 256
    chunk_bytes = CH * 1024
    iters = bytes_wg // (chunk_bytes * NW)
    assert iters * chunk_bytes * NW == bytes_wg
    step = chunk_bytes * NW
    RING = 2 * CH
    assert RING - 1 <= 63
    CSC = 0x3E029558
    import struct, math
    cval = (128 ** -0.5) * math.log2(math.e)
    CSC = struct.unpack("<I", struct.pack("<f", cval))[0]

    vLane = 1
    vOff = 2
    vQ = 4
    vMask = 8
    vAcc = 12
    vA0 = 16
    vA1 = 20
    vS = 24
    vL = 28
    vT = 29
    vT2 = 30
    vAl = 31
    vU = 32
    vP = vU + G
    vK = (vP + G + 3) // 4 * 4
    vV = vK + 4 * CH
    vEnd = vV + 4 * CH
    nvgpr = vEnd

    sK = 16
    sV = 20
    sQ = 24
    sO = 28
    sD = 32
    sW = 36
    sIt = 40
    sCnt = 41
    sM = 42
    sC = 43
    sHead = 44
    sSplit = 45
    sWave = 46
    sTmp = 47
    sMC = 48
    sT2 = 49

    e = E()
    e("s_load_dwordx4 s[4:7], s[0:1], 0")
    e("s_load_dwordx4 s[8:11], s[0:1], 16")
    e("s_load_dwordx4 s[12:15], s[0:1], 32")
    e(f"s_cmp_ge_u32 s2, {NWG}")
    e("s_cbranch_scc1 L_end")
    lg = NS.bit_length() - 1
    if p.map == 0:
        e(f"s_lshr_b32 s{sHead}, s2, {lg}")
        e(f"s_and_b32 s{sSplit}, s2, {NS-1}")
    else:
        e(f"s_and_b32 s{sHead}, s2, 63")
        e(f"s_lshr_b32 s{sSplit}, s2, 6")
    e(f"v_and_b32 v{vLane}, 63, v0")
    e(f"v_lshrrev_b32 v{vT}, 6, v0")
    e(f"v_lshlrev_b32 v{vOff}, 4, v{vLane}")
    e(f"v_readfirstlane_b32 s{sWave}, v{vT}")
    e(f"s_lshl_b32 s{sTmp}, s{sHead}, 22")
    e(f"s_mul_i32 s{sT2}, s{sSplit}, {bytes_wg}")
    e(f"s_add_u32 s{sTmp}, s{sTmp}, s{sT2}")
    if p.inter == 0:
        e(f"s_mul_i32 s{sIt}, s{sWave}, {chunk_bytes}")
        tstride = 1024
    else:
        e(f"s_lshl_b32 s{sIt}, s{sWave}, {10 + p.inter - 1}")
        tstride = None
    e(f"v_and_b32 v{vT2}, 15, v{vLane}")
    e(f"v_lshlrev_b32 v{vT2}, 4, v{vT2}")
    e(f"s_lshl_b32 s{sT2}, s{sHead}, 8")
    e(f"s_mov_b32 s{sK+2}, {bytes_wg}")
    e(f"s_mov_b32 s{sK+3}, 0x00020000")
    e(f"s_mov_b32 s{sV+2}, {bytes_wg}")
    e(f"s_mov_b32 s{sV+3}, 0x00020000")
    e(f"s_mov_b32 s{sQ+2}, 16384")
    e(f"s_mov_b32 s{sQ+3}, 0x00020000")
    e("s_waitcnt lgkmcnt(0)")
    e(f"s_mov_b32 s{sQ}, s4")
    e(f"s_mov_b32 s{sQ+1}, s5")
    e(f"s_add_u32 s{sK}, s6, s{sTmp}")
    e(f"s_addc_u32 s{sK+1}, s7, 0")
    e(f"s_add_u32 s{sV}, s8, s{sTmp}")
    e(f"s_addc_u32 s{sV+1}, s9, 0")
    e(f"buffer_load_dwordx4 {vr(vQ,4)}, v{vT2}, s[{sQ}:{sQ+3}], s{sT2} offen")

    def load_off(t):
        if p.inter == 0:
            return t * 1024
        gran = 1 << (p.inter - 1)
        return (t // gran) * gran * 1024 * NW + (t % gran) * 1024

    def issue(srd, dst, t, extra):
        off = load_off(t) + extra
        imm = off & 0xC00 if True else 0
        hi = off - imm
        if hi == 0:
            so = f"s{sIt}"
        else:
            if issue.cur != (hi,):
                e(f"s_add_u32 s{sTmp}, s{sIt}, {hi}")
                issue.cur = (hi,)
            so = f"s{sTmp}"
        o = f" offset:{imm}" if imm else ""
        e(f"buffer_load_dwordx4 {vr(dst,4)}, v{vOff}, s[{srd}:{srd+3}], {so} offen{o}{flags}")
    issue.cur = None

    for t in range(CH):
        issue(sK, vK + 4 * t, t, 0)
    issue.cur = None
    for t in range(CH):
        issue(sV, vV + 4 * t, t, 0)
    issue.cur = None

    e(f"s_mov_b32 s{sO}, s10")
    e(f"s_mov_b32 s{sO+1}, s11")
    e(f"s_mov_b32 s{sO+2}, 16384")
    e(f"s_mov_b32 s{sO+3}, 0x00020000")
    e(f"s_mov_b32 s{sD}, s12")
    e(f"s_mov_b32 s{sD+1}, s13")
    e(f"s_mov_b32 s{sD+2}, 256")
    e(f"s_mov_b32 s{sD+3}, 0x00020000")
    e(f"s_mov_b32 s{sW}, s14")
    e(f"s_mov_b32 s{sW+1}, s15")
    e(f"s_mov_b32 s{sW+2}, {NWG*1024}")
    e(f"s_mov_b32 s{sW+3}, 0x00020000")
    e(f"s_mov_b32 s{sC}, 0x{CSC:08x}")
    e(f"s_mov_b32 s{sM}, 0xff7fffff")
    e(f"s_mov_b32 s{sCnt}, {iters}")
    e(f"v_and_b32 v{vT}, 15, v{vLane}")
    e(f"v_and_b32 v{vT2}, 1, v{vLane}")
    e(f"v_lshlrev_b32 v{vT2}, 4, v{vT2}")
    e(f"v_mov_b32 v{vAl}, 0xffff")
    e(f"v_lshlrev_b32 v{vAl}, v{vT2}, v{vAl}")
    e(f"v_lshrrev_b32 v{vT}, 1, v{vT}")
    for r in range(4):
        e(f"v_cmp_eq_u32 vcc, {r}, v{vT}")
        e("s_nop 1")
        e(f"v_cndmask_b32 v{vMask+r}, 0, v{vAl}, vcc")
    for r in range(4):
        e(f"v_mov_b32 v{vAcc+r}, 0")
    e(f"v_mov_b32 v{vL}, 0")

    e.label("L_loop")
    W = RING - 1
    for g in range(G):
        for b in range(4):
            t = 4 * g + b
            k = vK + 4 * t
            e(f"s_waitcnt vmcnt({W})")
            e(f"v_dot2_f32_bf16 v{vS+b}, v{k}, v{vQ}, 0")
            for r in range(1, 4):
                e(f"v_dot2_f32_bf16 v{vS+b}, v{k+r}, v{vQ+r}, v{vS+b}")
            issue(sK, k, t, step)
        e("s_nop 1")
        u = vU + g
        e(f"v_add_f32_dpp v{vS+0}, v{vS+0}, v{vS+0} row_mirror row_mask:0xf bank_mask:0x3")
        e(f"v_add_f32_dpp v{vS+1}, v{vS+1}, v{vS+1} row_mirror row_mask:0xf bank_mask:0x3")
        e(f"v_add_f32_dpp v{vS+0}, v{vS+2}, v{vS+2} row_mirror row_mask:0xf bank_mask:0xc")
        e(f"v_add_f32_dpp v{vS+1}, v{vS+3}, v{vS+3} row_mirror row_mask:0xf bank_mask:0xc")
        e("s_nop 0")
        e(f"v_add_f32_dpp v{u}, v{vS+0}, v{vS+0} row_half_mirror row_mask:0xf bank_mask:0x5")
        e(f"v_add_f32_dpp v{u}, v{vS+1}, v{vS+1} row_half_mirror row_mask:0xf bank_mask:0xa")
        e("s_nop 1")
        e(f"v_add_f32_dpp v{u}, v{u}, v{u} quad_perm:[1,0,3,2] row_mask:0xf bank_mask:0xf")
        e("s_nop 1")
        e(f"v_add_f32_dpp v{u}, v{u}, v{u} quad_perm:[2,3,0,1] row_mask:0xf bank_mask:0xf")
    issue.cur = None
    e(f"v_mov_b32 v{vT}, s{sM}")
    g = 0
    while g < G:
        if g + 1 < G:
            e(f"v_max3_f32 v{vT}, v{vT}, v{vU+g}, v{vU+g+1}")
            g += 2
        else:
            e(f"v_max_f32 v{vT}, v{vT}, v{vU+g}")
            g += 1
    e("s_nop 1")
    e(f"v_max_f32_dpp v{vT}, v{vT}, v{vT} row_half_mirror row_mask:0xf bank_mask:0xf")
    e("s_nop 1")
    e(f"v_max_f32_dpp v{vT}, v{vT}, v{vT} row_mirror row_mask:0xf bank_mask:0xf")
    e("s_nop 1")
    e(f"v_max_f32_dpp v{vT}, v{vT}, v{vT} row_bcast:15 row_mask:0xa bank_mask:0xf")
    e("s_nop 1")
    e(f"v_max_f32_dpp v{vT}, v{vT}, v{vT} row_bcast:31 row_mask:0xc bank_mask:0xf")
    e(f"v_mov_b32 v{vAl}, s{sM}")
    e(f"v_readlane_b32 s{sM}, v{vT}, 63")
    e("s_nop 1")
    e(f"v_subrev_f32 v{vAl}, s{sM}, v{vAl}")
    e(f"v_mov_b32 v{vT}, s{sM}")
    e(f"v_mul_f32 v{vAl}, s{sC}, v{vAl}")
    e(f"v_mul_f32 v{vT}, s{sC}, v{vT}")
    e(f"v_exp_f32 v{vAl}, v{vAl}")
    for g in range(G):
        e(f"v_fma_f32 v{vU+g}, v{vU+g}, s{sC}, -v{vT}")
    for g in range(G):
        e(f"v_exp_f32 v{vU+g}, v{vU+g}")
    for r in range(4):
        e(f"v_mul_f32 v{vAcc+r}, v{vAcc+r}, v{vAl}")
    e(f"v_mul_f32 v{vL}, v{vL}, v{vAl}")
    for g in range(G):
        e(f"v_cvt_pk_bf16_f32 v{vP+g}, v{vU+g}, v{vU+g}")
    for g in range(G):
        e(f"v_and_b32 v{vU+g}, 0xffff0000, v{vP+g}")
    for g in range(G):
        e(f"v_add_f32 v{vL}, v{vL}, v{vU+g}")
    for t in range(CH):
        g, b = t // 4, t % 4
        A = vA0 if t % 2 == 0 else vA1
        for r in range(4):
            e(f"v_and_b32_dpp v{A+r}, v{vP+g}, v{vMask+r} row_newbcast:{4*b} row_mask:0xf bank_mask:0xf")
        e(f"s_waitcnt vmcnt({W})")
        e("s_nop 0")
        e(f"v_mfma_f32_16x16x32_bf16 {vr(vAcc,4)}, {vr(A,4)}, {vr(vV+4*t,4)}, {vr(vAcc,4)}")
        issue(sV, vV + 4 * t, t, step)
    issue.cur = None
    e(f"s_add_u32 s{sIt}, s{sIt}, {step}")
    e(f"s_sub_u32 s{sCnt}, s{sCnt}, 1")
    e(f"s_cmp_lg_u32 s{sCnt}, 0")
    e("s_cbranch_scc1 L_loop")

    e(f"v_add_f32_dpp v{vL}, v{vL}, v{vL} row_half_mirror row_mask:0xf bank_mask:0xf")
    e("s_nop 1")
    e(f"v_add_f32_dpp v{vL}, v{vL}, v{vL} row_mirror row_mask:0xf bank_mask:0xf")
    e("s_nop 1")
    e(f"v_add_f32_dpp v{vL}, v{vL}, v{vL} row_bcast:15 row_mask:0xa bank_mask:0xf")
    e("s_nop 1")
    e(f"v_add_f32_dpp v{vL}, v{vL}, v{vL} row_bcast:31 row_mask:0xc bank_mask:0xf")
    e("s_nop 1")
    e(f"v_readlane_b32 s{sTmp}, v{vL}, 63")
    e(f"v_and_b32 v{vT}, 15, v{vLane}")
    e(f"v_lshlrev_b32 v{vT}, 5, v{vT}")
    e(f"v_lshrrev_b32 v{vT2}, 4, v{vLane}")
    e(f"v_lshl_add_u32 v{vT}, v{vT2}, 4, v{vT}")
    e(f"s_lshl_b32 s{sT2}, s{sWave}, 9")
    e(f"v_add_u32 v{vT}, s{sT2}, v{vT}")
    e(f"v_mov_b32 v{vA0}, s{sM}")
    e(f"v_mov_b32 v{vA0+1}, s{sTmp}")
    e(f"s_lshl_b32 s{sT2}, s{sWave}, 3")
    e(f"v_mov_b32 v{vT2}, s{sT2}")
    e("s_mov_b32 exec_hi, 0")
    e(f"ds_write_b128 v{vT}, {vr(vAcc,4)}")
    e("s_mov_b64 exec, 1")
    e(f"ds_write_b64 v{vT2}, {vr(vA0,2)} offset:{NW*512}")
    e("s_mov_b64 exec, -1")
    e("s_waitcnt lgkmcnt(0)")
    e("s_barrier")
    e(f"s_cmp_lg_u32 s{sWave}, 0")
    e("s_cbranch_scc1 L_end")
    e("s_waitcnt vmcnt(0)")
    R = vK
    ML = R
    OO = R + 2 * NW
    e(f"v_mov_b32 v{vT}, 0")
    e(f"v_lshlrev_b32 v{vT2}, 3, v{vLane}")
    for w in range(0, NW, 2):
        e(f"ds_read_b128 {vr(ML+2*w,4)}, v{vT} offset:{NW*512 + w*8}")
    for w in range(NW):
        e(f"ds_read_b64 {vr(OO+2*w,2)}, v{vT2} offset:{w*512}")
    e("s_waitcnt lgkmcnt(0)")

    def combine(n, mreg, lreg, oreg, dst):
        M = dst + 2
        e(f"v_mov_b32 v{M}, v{mreg(0)}")
        for w in range(1, n):
            e(f"v_max_f32 v{M}, v{M}, v{mreg(w)}")
        for w in range(n):
            e(f"v_sub_f32 v{mreg(w)}, v{mreg(w)}, v{M}")
        for w in range(n):
            e(f"v_mul_f32 v{mreg(w)}, s{sC}, v{mreg(w)}")
        for w in range(n):
            e(f"v_exp_f32 v{mreg(w)}, v{mreg(w)}")
        e("s_nop 0")
        e(f"v_mul_f32 v{dst}, v{mreg(0)}, v{oreg(0)}")
        e(f"v_mul_f32 v{dst+1}, v{mreg(0)}, v{oreg(0)+1}")
        e(f"v_mul_f32 v{dst+3}, v{mreg(0)}, v{lreg(0)}")
        for w in range(1, n):
            e(f"v_fmac_f32 v{dst}, v{mreg(w)}, v{oreg(w)}")
            e(f"v_fmac_f32 v{dst+1}, v{mreg(w)}, v{oreg(w)+1}")
            e(f"v_fmac_f32 v{dst+3}, v{mreg(w)}, v{lreg(w)}")

    combine(NW, lambda w: ML + 2 * w, lambda w: ML + 2 * w + 1, lambda w: OO + 2 * w, vA0)
    e(f"s_lshl_b32 s{sT2}, s{sHead}, {10+lg}")
    e(f"s_lshl_b32 s{sTmp}, s{sSplit}, 10")
    e(f"s_add_u32 s{sTmp}, s{sTmp}, s{sT2}")
    e(f"buffer_store_dwordx4 {vr(vA0,4)}, v{vOff}, s[{sW}:{sW+3}], s{sTmp} offen sc1")
    e(f"s_lshl_b32 s{sTmp}, s{sHead}, 2")
    e(f"v_mov_b32 v{vT}, 1")
    e(f"v_mov_b32 v{vT2}, s{sTmp}")
    e("s_waitcnt vmcnt(0)")
    e("s_mov_b64 exec, 1")
    e(f"buffer_atomic_add v{vT}, v{vT2}, s[{sD}:{sD+3}], 0 offen sc0")
    e("s_waitcnt vmcnt(0)")
    e(f"v_readfirstlane_b32 s{sMC}, v{vT}")
    e("s_mov_b64 exec, -1")
    e(f"s_cmp_lg_u32 s{sMC}, {NS-1}")
    e("s_cbranch_scc1 L_end")
    for s in range(NS):
        hi = (s * 1024) & ~0xFFF
        imm = (s * 1024) & 0xFFF
        e(f"s_add_u32 s{sTmp}, s{sT2}, {hi}")
        o = f" offset:{imm}" if imm else ""
        e(f"buffer_load_dwordx4 {vr(R+4*s,4)}, v{vOff}, s[{sW}:{sW+3}], s{sTmp} offen{o} sc1")
    e("s_waitcnt vmcnt(0)")
    combine(NS, lambda s: R + 4 * s + 2, lambda s: R + 4 * s + 3, lambda s: R + 4 * s, vA1)
    e(f"v_rcp_f32 v{vT}, v{vA1+3}")
    e(f"v_lshlrev_b32 v{vT2}, 2, v{vLane}")
    e(f"s_lshl_b32 s{sTmp}, s{sHead}, 8")
    e(f"v_mul_f32 v{vA1}, v{vA1}, v{vT}")
    e(f"v_mul_f32 v{vA1+1}, v{vA1+1}, v{vT}")
    e(f"v_cvt_pk_bf16_f32 v{vT}, v{vA1}, v{vA1+1}")
    e(f"buffer_store_dword v{vT}, v{vT2}, s[{sO}:{sO+3}], s{sTmp} offen")
    e.label("L_end")

    lds = NW * 512 + NW * 8
    if p.lds:
        lds = max(lds, p.lds)
    nv = max(nvgpr, p.minvgpr)
    acc = (nv + 3) // 4 * 4
    out = HEADER
    out += f"; @launch grid=({NWG},1,1) block=({NW*64},1,1) lds={lds}\n"
    out += f""".amdgcn_target "amdgcn-amd-amdhsa--gfx950"
.text
.globl {NAME}_kernel
.p2align 8
.type {NAME}_kernel,@function
{NAME}_kernel:
"""
    out += e.text()
    out += f"""s_endpgm
.section .rodata,"a"
.p2align 6
.amdhsa_kernel {NAME}_kernel
  .amdhsa_next_free_vgpr {nv}
  .amdhsa_next_free_sgpr 56
  .amdhsa_accum_offset {acc}
  .amdhsa_group_segment_fixed_size 0
  .amdhsa_kernarg_size 48
  .amdhsa_user_sgpr_count 2
  .amdhsa_user_sgpr_kernarg_segment_ptr 1
  .amdhsa_system_sgpr_workgroup_id_x 1
.end_amdhsa_kernel
"""
    return out

if __name__ == "__main__":
    ap = argparse.ArgumentParser()
    ap.add_argument("--nw", type=int, default=8)
    ap.add_argument("--ns", type=int, default=4)
    ap.add_argument("--ch", type=int, default=16)
    ap.add_argument("--flags", default="")
    ap.add_argument("--map", type=int, default=0)
    ap.add_argument("--inter", type=int, default=0)
    ap.add_argument("--lds", type=int, default=0)
    ap.add_argument("--minvgpr", type=int, default=0)
    ap.add_argument("-o", default="cdna_kernels/" + NAME + ".s")
    p = ap.parse_args()
    if p.flags:
        p.flags = " " + p.flags.replace(",", " ")
    open(p.o, "w").write(gen(p))
```

```python
import sys, re, argparse, struct, math

NAME = "standalone__softmax_full_bidir__decode"

HEADER = """; Kernarg layout for this problem (48 bytes, ptrs only, base s[0:1]):
"""

class E:
    def __init__(self):
        self.lines = []
    def __call__(self, s):
        self.lines.append("    " + s)
    def label(self, s):
        self.lines.append(s + ":")
    def c(self, s):
        self.lines.append("    ; " + s)
    def text(self):
        return "\n".join(self.lines) + "\n"

def vr(a, n=1):
    return f"v{a}" if n == 1 else f"v[{a}:{a+n-1}]"

def gen(p):
    NW, NS, CH, J = p.nw, p.ns, p.ch, p.j
    G = CH // 4
    flags = p.flags
    NWG = 64 * NS
    NWK = NS * NW
    NCH = 4096 // CH
    CB = CH * 1024
    POOL0 = J * NWK
    NPOOL = NCH - POOL0
    assert NPOOL >= 0 and J >= 3
    RING = 2 * CH
    W = RING - 1
    cval = (128 ** -0.5) * math.log2(math.e)
    CSC = struct.unpack("<I", struct.pack("<f", cval))[0]
    lgNS = NS.bit_length() - 1
    lgCB = CB.bit_length() - 1
    OOB = 0x20000000
    CNT_OFF = 0x80000
    WS_BYTES = 0x100000

    vLane, vOff = 1, 2
    vAtom = 3
    vQ, vMask, vAcc, vA0, vA1, vS = 4, 8, 12, 16, 20, 24
    vL, vT, vT2, vAl = 28, 29, 30, 31
    vU = 32
    vP = vU + G
    vCo = vP + G
    vK = (vCo + 2 + 3) // 4 * 4
    vV = vK + 4 * CH
    nvgpr = vV + 4 * CH

    sK, sV, sQ, sO, sD, sW = 8, 12, 16, 20, 24, 28
    sNext, sN, sM, sC, sHead, sSplit, sWave, sTmp, sIdx, sT2, sBase, sStat = range(32, 44)

    e = E()
    def stamp(i):
        if p.diag:
            e(f"s_memrealtime s[{60+2*i}:{61+2*i}]")
    if p.diag:
        for i in range(60, 84):
            e(f"s_mov_b32 s{i}, 0")
    stamp(0)
    e(f"s_load_dwordx2 s[{sK}:{sK+1}], s[0:1], 8")
    e(f"s_load_dwordx2 s[{sV}:{sV+1}], s[0:1], 16")
    e(f"s_load_dwordx2 s[{sQ}:{sQ+1}], s[0:1], 0")
    e(f"s_load_dwordx2 s[{sO}:{sO+1}], s[0:1], 24")
    e(f"s_load_dwordx2 s[{sD}:{sD+1}], s[0:1], 32")
    e(f"s_load_dwordx2 s[{sW}:{sW+1}], s[0:1], 40")
    e(f"s_cmp_ge_u32 s2, {NWG}")
    e("s_cbranch_scc1 L_end")
    e(f"v_lshrrev_b32 v{vT}, 6, v0")
    e(f"v_and_b32 v{vLane}, 63, v0")
    e(f"s_lshr_b32 s{sHead}, s2, {lgNS}")
    e(f"v_readfirstlane_b32 s{sWave}, v{vT}")
    e(f"s_and_b32 s{sSplit}, s2, {NS-1}")
    e(f"v_lshlrev_b32 v{vOff}, 4, v{vLane}")
    e(f"s_lshl_b32 s{sBase}, s{sHead}, 22")
    if p.spat == 0:
        e(f"s_mul_i32 s{sTmp}, s{sSplit}, {NW}")
        sstat_step = NWK * CB
    else:
        e(f"s_mul_i32 s{sTmp}, s{sSplit}, {J*NW}")
        sstat_step = NW * CB
    e(f"s_add_u32 s{sTmp}, s{sTmp}, s{sWave}")
    e(f"s_lshl_b32 s{sTmp}, s{sTmp}, {lgCB}")
    e(f"s_add_u32 s{sNext}, s{sBase}, s{sTmp}")
    e(f"s_mov_b32 s{sK+2}, 0x10000000")
    e(f"s_mov_b32 s{sK+3}, 0x00020000")
    e(f"s_mov_b32 s{sV+2}, 0x10000000")
    e(f"s_mov_b32 s{sV+3}, 0x00020000")
    e(f"s_mov_b32 s{sQ+2}, 16384")
    e(f"s_mov_b32 s{sQ+3}, 0x00020000")
    e(f"v_and_b32 v{vT2}, 0xf0, v{vOff}")
    e(f"s_lshl_b32 s{sT2}, s{sHead}, 8")
    e(f"s_cmp_eq_u32 s{sWave}, {NW}")
    e("s_cbranch_scc1 L_helper")
    e("s_waitcnt lgkmcnt(0)")
    stamp(1)

    def issue(srd, dst, t):
        off = t * 1024
        imm = off & 0xC00
        hi = off - imm
        if hi == 0:
            so = f"s{sNext}"
        else:
            if issue.cur != hi:
                e(f"s_add_u32 s{sTmp}, s{sNext}, {hi}")
                issue.cur = hi
            so = f"s{sTmp}"
        o = f" offset:{imm}" if imm else ""
        e(f"buffer_load_dwordx4 {vr(dst,4)}, v{vOff}, s[{srd}:{srd+3}], {so} offen{o}{flags}")
    issue.cur = None

    e(f"buffer_load_dwordx4 {vr(vQ,4)}, v{vT2}, s[{sQ}:{sQ+3}], s{sT2} offen")
    for t in range(CH):
        issue(sK, vK + 4 * t, t)
    issue.cur = None
    for t in range(CH):
        issue(sV, vV + 4 * t, t)
    issue.cur = None

    def other_srds():
        e(f"s_mov_b32 s{sD+2}, 256")
        e(f"s_mov_b32 s{sD+3}, 0x00020000")
        e(f"s_mov_b32 s{sW+2}, {WS_BYTES}")
        e(f"s_mov_b32 s{sW+3}, 0x00020000")
        e(f"s_lshl_b32 s{sTmp}, s{sHead}, 8")
        e(f"s_add_u32 s{sTmp}, s{sTmp}, {CNT_OFF}")
        e(f"v_mov_b32 v{vCo}, s{sTmp}")
        e(f"s_lshl_b32 s{sTmp}, s{sHead}, 2")
        e(f"v_mov_b32 v{vCo+1}, s{sTmp}")
    other_srds()
    e(f"s_mov_b32 s{sO+2}, 16384")
    e(f"s_mov_b32 s{sO+3}, 0x00020000")
    e(f"s_mov_b32 s{sC}, 0x{CSC:08x}")
    e(f"s_mov_b32 s{sM}, 0xff7fffff")
    e(f"s_mov_b32 s{sN}, 0")
    e(f"s_add_u32 s{sBase}, s{sBase}, {POOL0*CB}")
    e(f"v_and_b32 v{vT}, 15, v{vLane}")
    e(f"v_and_b32 v{vT2}, 1, v{vLane}")
    e(f"v_lshlrev_b32 v{vT2}, 4, v{vT2}")
    e(f"v_mov_b32 v{vAl}, 0xffff")
    e(f"v_lshlrev_b32 v{vAl}, v{vT2}, v{vAl}")
    e(f"v_lshrrev_b32 v{vT}, 1, v{vT}")
    for r in range(4):
        e(f"v_cmp_eq_u32 vcc, {r}, v{vT}")
        e("s_nop 1")
        e(f"v_cndmask_b32 v{vMask+r}, 0, v{vAl}, vcc")
    for r in range(4):
        e(f"v_mov_b32 v{vAcc+r}, 0")
    e(f"v_mov_b32 v{vL}, 0")
    stamp(2)

    e.label("L_loop")
    e(f"s_waitcnt vmcnt({W})")
    e(f"s_cmp_lt_u32 s{sN}, {J-3}")
    e("s_cbranch_scc0 L_dyn")
    e(f"s_add_u32 s{sNext}, s{sNext}, {sstat_step}")
    e.label("L_body")
    for g in range(G):
        for b in range(4):
            t = 4 * g + b
            k = vK + 4 * t
            if t:
                e(f"s_waitcnt vmcnt({W})")
            e(f"v_dot2_f32_bf16 v{vS+b}, v{k}, v{vQ}, 0")
            for r in range(1, 4):
                e(f"v_dot2_f32_bf16 v{vS+b}, v{k+r}, v{vQ+r}, v{vS+b}")
            issue(sK, k, t)
        e("s_nop 1")
        u = vU + g
        e(f"v_add_f32_dpp v{vS+0}, v{vS+0}, v{vS+0} row_mirror row_mask:0xf bank_mask:0x3")
        e(f"v_add_f32_dpp v{vS+1}, v{vS+1}, v{vS+1} row_mirror row_mask:0xf bank_mask:0x3")
        e(f"v_add_f32_dpp v{vS+0}, v{vS+2}, v{vS+2} row_mirror row_mask:0xf bank_mask:0xc")
        e(f"v_add_f32_dpp v{vS+1}, v{vS+3}, v{vS+3} row_mirror row_mask:0xf bank_mask:0xc")
        e("s_nop 0")
        e(f"v_add_f32_dpp v{u}, v{vS+0}, v{vS+0} row_half_mirror row_mask:0xf bank_mask:0x5")
        e(f"v_add_f32_dpp v{u}, v{vS+1}, v{vS+1} row_half_mirror row_mask:0xf bank_mask:0xa")
        e("s_nop 1")
        e(f"v_add_f32_dpp v{u}, v{u}, v{u} quad_perm:[1,0,3,2] row_mask:0xf bank_mask:0xf")
        e("s_nop 1")
        e(f"v_add_f32_dpp v{u}, v{u}, v{u} quad_perm:[2,3,0,1] row_mask:0xf bank_mask:0xf")
    issue.cur = None
    e(f"v_mov_b32 v{vT}, s{sM}")
    g = 0
    while g < G:
        if g + 1 < G:
            e(f"v_max3_f32 v{vT}, v{vT}, v{vU+g}, v{vU+g+1}")
            g += 2
        else:
            e(f"v_max_f32 v{vT}, v{vT}, v{vU+g}")
            g += 1
    e("s_nop 1")
    e(f"v_max_f32_dpp v{vT}, v{vT}, v{vT} row_half_mirror row_mask:0xf bank_mask:0xf")
    e("s_nop 1")
    e(f"v_max_f32_dpp v{vT}, v{vT}, v{vT} row_mirror row_mask:0xf bank_mask:0xf")
    e("s_nop 1")
    e(f"v_max_f32_dpp v{vT}, v{vT}, v{vT} row_bcast:15 row_mask:0xa bank_mask:0xf")
    e("s_nop 1")
    e(f"v_max_f32_dpp v{vT}, v{vT}, v{vT} row_bcast:31 row_mask:0xc bank_mask:0xf")
    e(f"v_mov_b32 v{vAl}, s{sM}")
    e(f"v_readlane_b32 s{sM}, v{vT}, 63")
    e("s_nop 1")
    e(f"v_subrev_f32 v{vAl}, s{sM}, v{vAl}")
    e(f"v_mov_b32 v{vT}, s{sM}")
    e(f"v_mul_f32 v{vAl}, s{sC}, v{vAl}")
    e(f"v_mul_f32 v{vT}, s{sC}, v{vT}")
    e(f"v_exp_f32 v{vAl}, v{vAl}")
    for g in range(G):
        e(f"v_fma_f32 v{vU+g}, v{vU+g}, s{sC}, -v{vT}")
    for g in range(G):
        e(f"v_exp_f32 v{vU+g}, v{vU+g}")
    for r in range(4):
        e(f"v_mul_f32 v{vAcc+r}, v{vAcc+r}, v{vAl}")
    e(f"v_mul_f32 v{vL}, v{vL}, v{vAl}")
    for g in range(G):
        e(f"v_cvt_pk_bf16_f32 v{vP+g}, v{vU+g}, v{vU+g}")
    for g in range(G):
        e(f"v_and_b32 v{vU+g}, 0xffff0000, v{vP+g}")
    for g in range(G):
        e(f"v_add_f32 v{vL}, v{vL}, v{vU+g}")
    if G == 1:
        e("s_nop 0")
    for t in range(CH):
        g, b = t // 4, t % 4
        A = vA0 if t % 2 == 0 else vA1
        for r in range(4):
            e(f"v_and_b32_dpp v{A+r}, v{vP+g}, v{vMask+r} row_newbcast:{4*b} row_mask:0xf bank_mask:0xf")
        e(f"s_waitcnt vmcnt({W})")
        e("s_nop 0")
        e(f"v_mfma_f32_16x16x32_bf16 {vr(vAcc,4)}, {vr(A,4)}, {vr(vV+4*t,4)}, {vr(vAcc,4)}")
        issue(sV, vV + 4 * t, t)
    issue.cur = None
    e(f"s_add_u32 s{sN}, s{sN}, 1")
    e(f"s_cmp_lt_u32 s{sNext}, {OOB}")
    e("s_cbranch_scc1 L_loop")
    e("s_branch L_epi")

    e.label("L_dyn")
    e(f"s_cmp_gt_u32 s{sN}, {J-2}")
    e("s_cbranch_scc1 L_dyn2")
    e(f"s_add_u32 s{sNext}, s{sNext}, {sstat_step}")
    e(f"s_cmp_eq_u32 s{sN}, {J-2}")
    e("s_cbranch_scc1 L_dyn1")
    e("s_mov_b64 exec, 1")
    e(f"buffer_load_dword v{vAtom}, v{vCo+1}, s[{sD}:{sD+3}], 0 offen sc1")
    e("s_mov_b64 exec, -1")
    e("s_branch L_body")
    e.label("L_dyn1")
    e(f"v_readfirstlane_b32 s{sIdx}, v{vAtom}")
    e(f"s_bitcmp1_b32 s{sIdx}, 8")
    e("s_cbranch_scc1 L_deq")
    e.label("L_spin")
    e("s_sleep 8")
    e("s_mov_b64 exec, 1")
    e(f"buffer_load_dword v{vAtom}, v{vCo+1}, s[{sD}:{sD+3}], 0 offen sc1")
    e("s_mov_b64 exec, -1")
    e("s_waitcnt vmcnt(0)")
    e(f"v_readfirstlane_b32 s{sIdx}, v{vAtom}")
    e(f"s_bitcmp1_b32 s{sIdx}, 8")
    e("s_cbranch_scc0 L_spin")
    e("s_branch L_deq")
    e.label("L_dyn2")
    e(f"v_readfirstlane_b32 s{sIdx}, v{vAtom}")
    e(f"s_cmp_ge_u32 s{sIdx}, {NPOOL}")
    e("s_cbranch_scc1 L_dry")
    e(f"s_lshl_b32 s{sIdx}, s{sIdx}, {lgCB}")
    e(f"s_add_u32 s{sNext}, s{sBase}, s{sIdx}")
    e.label("L_deq")
    e(f"v_mov_b32 v{vAtom}, 1")
    e("s_mov_b64 exec, 1")
    e(f"buffer_atomic_add v{vAtom}, v{vCo}, s[{sW}:{sW+3}], 0 offen sc0")
    e("s_mov_b64 exec, -1")
    e("s_branch L_body")
    e.label("L_dry")
    e(f"s_mov_b32 s{sNext}, {OOB}")
    e("s_branch L_body")

    e.label("L_helper")
    other_srds()
    e(f"v_mov_b32 v{vAtom}, 1")
    e("s_mov_b64 exec, 1")
    e("s_waitcnt lgkmcnt(0)")
    e(f"buffer_atomic_add v{vAtom}, v{vCo+1}, s[{sD}:{sD+3}], 0 offen sc0")
    e("s_waitcnt vmcnt(0)")
    e(f"v_readfirstlane_b32 s{sIdx}, v{vAtom}")
    e(f"s_and_b32 s{sIdx}, s{sIdx}, 0xff")
    e(f"s_cmp_lg_u32 s{sIdx}, 0")
    e("s_cbranch_scc1 L_end")
    e(f"v_mov_b32 v{vAtom}, 0")
    e(f"buffer_store_dword v{vAtom}, v{vCo}, s[{sW}:{sW+3}], 0 offen sc0 sc1")
    e(f"v_mov_b32 v{vT}, 0x100")
    e("s_waitcnt vmcnt(0)")
    e(f"buffer_atomic_add v{vT}, v{vCo+1}, s[{sD}:{sD+3}], 0 offen")
    e("s_branch L_end")

    e.label("L_epi")
    stamp(5)
    e(f"v_add_f32_dpp v{vL}, v{vL}, v{vL} row_half_mirror row_mask:0xf bank_mask:0xf")
    e("s_nop 1")
    e(f"v_add_f32_dpp v{vL}, v{vL}, v{vL} row_mirror row_mask:0xf bank_mask:0xf")
    e("s_nop 1")
    e(f"v_add_f32_dpp v{vL}, v{vL}, v{vL} row_bcast:15 row_mask:0xa bank_mask:0xf")
    e("s_nop 1")
    e(f"v_add_f32_dpp v{vL}, v{vL}, v{vL} row_bcast:31 row_mask:0xc bank_mask:0xf")
    e("s_nop 1")
    e(f"v_readlane_b32 s{sIdx}, v{vL}, 63")
    e(f"v_and_b32 v{vT}, 15, v{vLane}")
    e(f"v_lshlrev_b32 v{vT}, 5, v{vT}")
    e(f"v_lshrrev_b32 v{vT2}, 4, v{vLane}")
    e(f"v_lshl_add_u32 v{vT}, v{vT2}, 4, v{vT}")
    e(f"s_lshl_b32 s{sT2}, s{sWave}, 9")
    e(f"v_add_u32 v{vT}, s{sT2}, v{vT}")
    e(f"v_mov_b32 v{vA0}, s{sM}")
    e(f"v_mov_b32 v{vA0+1}, s{sIdx}")
    e(f"s_lshl_b32 s{sT2}, s{sWave}, 3")
    e(f"v_mov_b32 v{vT2}, s{sT2}")
    e("s_mov_b32 exec_hi, 0")
    e(f"ds_write_b128 v{vT}, {vr(vAcc,4)}")
    e("s_mov_b64 exec, 1")
    e(f"ds_write_b64 v{vT2}, {vr(vA0,2)} offset:{NW*512}")
    e("s_mov_b64 exec, -1")
    e("s_waitcnt lgkmcnt(0)")
    e("s_barrier")
    stamp(6)
    e(f"s_cmp_lg_u32 s{sWave}, 0")
    e("s_cbranch_scc1 L_fin")
    e("s_waitcnt vmcnt(0)")
    R = vK
    ML = R
    OO = R + 2 * NW
    assert 4 * NW <= 8 * CH and 4 * NS <= 8 * CH
    e(f"v_mov_b32 v{vT}, 0")
    e(f"v_lshlrev_b32 v{vT2}, 3, v{vLane}")
    if NW == 1:
        e(f"ds_read_b64 {vr(ML,2)}, v{vT} offset:{NW*512}")
    for w in range(0, NW - 1, 2):
        e(f"ds_read_b128 {vr(ML+2*w,4)}, v{vT} offset:{NW*512 + w*8}")
    for w in range(NW):
        e(f"ds_read_b64 {vr(OO+2*w,2)}, v{vT2} offset:{w*512}")
    e("s_waitcnt lgkmcnt(0)")

    def combine(n, mreg, lreg, oreg, dst):
        M = dst + 2
        e(f"v_mov_b32 v{M}, v{mreg(0)}")
        for w in range(1, n):
            e(f"v_max_f32 v{M}, v{M}, v{mreg(w)}")
        for w in range(n):
            e(f"v_sub_f32 v{mreg(w)}, v{mreg(w)}, v{M}")
        for w in range(n):
            e(f"v_mul_f32 v{mreg(w)}, s{sC}, v{mreg(w)}")
        for w in range(n):
            e(f"v_exp_f32 v{mreg(w)}, v{mreg(w)}")
        e("s_nop 0")
        e(f"v_mul_f32 v{dst}, v{mreg(0)}, v{oreg(0)}")
        e(f"v_mul_f32 v{dst+1}, v{mreg(0)}, v{oreg(0)+1}")
        e(f"v_mul_f32 v{dst+3}, v{mreg(0)}, v{lreg(0)}")
        for w in range(1, n):
            e(f"v_fmac_f32 v{dst}, v{mreg(w)}, v{oreg(w)}")
            e(f"v_fmac_f32 v{dst+1}, v{mreg(w)}, v{oreg(w)+1}")
            e(f"v_fmac_f32 v{dst+3}, v{mreg(w)}, v{lreg(w)}")

    combine(NW, lambda w: ML + 2 * w, lambda w: ML + 2 * w + 1, lambda w: OO + 2 * w, vA0)
    e(f"s_lshl_b32 s{sT2}, s{sHead}, {10+lgNS}")
    e(f"s_lshl_b32 s{sTmp}, s{sSplit}, 10")
    e(f"s_add_u32 s{sTmp}, s{sTmp}, s{sT2}")
    e(f"buffer_store_dwordx4 {vr(vA0,4)}, v{vOff}, s[{sW}:{sW+3}], s{sTmp} offen sc1")
    e(f"v_mov_b32 v{vT}, 0x10000")
    stamp(7)
    e("s_waitcnt vmcnt(0)")
    stamp(8)
    e("s_mov_b64 exec, 1")
    e(f"buffer_atomic_add v{vT}, v{vCo+1}, s[{sD}:{sD+3}], 0 offen sc0")
    e("s_waitcnt vmcnt(0)")
    e(f"v_readfirstlane_b32 s{sIdx}, v{vT}")
    e("s_mov_b64 exec, -1")
    stamp(9)
    e(f"s_lshr_b32 s{sIdx}, s{sIdx}, 16")
    e(f"s_cmp_lg_u32 s{sIdx}, {NS-1}")
    e("s_cbranch_scc1 L_fin")
    for s in range(NS):
        hi = (s * 1024) & ~0xFFF
        imm = (s * 1024) & 0xFFF
        if s % 4 == 0:
            e(f"s_add_u32 s{sTmp}, s{sT2}, {hi}")
        o = f" offset:{imm}" if imm else ""
        e(f"buffer_load_dwordx4 {vr(R+4*s,4)}, v{vOff}, s[{sW}:{sW+3}], s{sTmp} offen{o} sc1")
    e("s_waitcnt vmcnt(0)")
    stamp(10)
    combine(NS, lambda s: R + 4 * s + 2, lambda s: R + 4 * s + 3, lambda s: R + 4 * s, vA1)
    e(f"v_rcp_f32 v{vT}, v{vA1+3}")
    e(f"v_lshlrev_b32 v{vT2}, 2, v{vLane}")
    e(f"s_lshl_b32 s{sTmp}, s{sHead}, 8")
    e(f"v_mul_f32 v{vA1}, v{vA1}, v{vT}")
    e(f"v_mul_f32 v{vA1+1}, v{vA1+1}, v{vT}")
    e(f"v_cvt_pk_bf16_f32 v{vT}, v{vA1}, v{vA1+1}")
    e(f"buffer_store_dword v{vT}, v{vT2}, s[{sO}:{sO+3}], s{sTmp} offen")
    if p.diag:
        e("s_waitcnt vmcnt(0)")
        stamp(11)
    e.label("L_fin")
    if p.diag:
        e("s_waitcnt lgkmcnt(0) vmcnt(0)")
        e("s_mov_b64 exec, 1")
        e(f"s_mul_i32 s{sTmp}, s2, {NW}")
        e(f"s_add_u32 s{sTmp}, s{sTmp}, s{sWave}")
        e(f"s_lshl_b32 s{sTmp}, s{sTmp}, 6")
        e(f"s_add_u32 s{sTmp}, s{sTmp}, 0x100000")
        e(f"s_mov_b32 s{sW+2}, 0x1000000")
        e(f"v_mov_b32 v{vT}, 0")
        e(f"s_mov_b32 s{60+2*3}, s{sN}")
        for i in range(12):
            e(f"v_mov_b32 v{vK+i}, s{60+2*i}")
        e(f"s_getreg_b32 s58, hwreg(HW_REG_XCC_ID)")
        e(f"s_getreg_b32 s59, hwreg(HW_REG_HW_ID)")
        e(f"v_mov_b32 v{vK+12}, s58")
        e(f"v_mov_b32 v{vK+13}, s59")
        e(f"v_mov_b32 v{vK+14}, s2")
        e(f"v_mov_b32 v{vK+15}, s{sWave}")
        for i in range(4):
            e(f"buffer_store_dwordx4 {vr(vK+4*i,4)}, v{vT}, s[{sW}:{sW+3}], s{sTmp} offen offset:{16*i}")
    e.label("L_end")

    lds = max(NW * 512 + NW * 8, p.lds)
    nv = max(nvgpr, p.minvgpr)
    acc = (nv + 3) // 4 * 4
    out = HEADER
    out += f"; @launch grid=({NWG},1,1) block=({(NW+1)*64},1,1) lds={lds}\n"
    out += f""".amdgcn_target "amdgcn-amd-amdhsa--gfx950"
.text
.globl {NAME}_kernel
.p2align 8
.type {NAME}_kernel,@function
{NAME}_kernel:
"""
    out += e.text()
    out += f"""s_endpgm
.section .rodata,"a"
.p2align 6
.amdhsa_kernel {NAME}_kernel
  .amdhsa_next_free_vgpr {nv}
  .amdhsa_next_free_sgpr {88 if p.diag else 48}
  .amdhsa_accum_offset {acc}
  .amdhsa_group_segment_fixed_size 0
  .amdhsa_kernarg_size 48
  .amdhsa_user_sgpr_count 2
  .amdhsa_user_sgpr_kernarg_segment_ptr 1
  .amdhsa_system_sgpr_workgroup_id_x 1
.end_amdhsa_kernel
"""
    return out

if __name__ == "__main__":
    ap = argparse.ArgumentParser()
    ap.add_argument("--nw", type=int, default=4)
    ap.add_argument("--ns", type=int, default=4)
    ap.add_argument("--ch", type=int, default=8)
    ap.add_argument("--j", type=int, default=24)
    ap.add_argument("--spat", type=int, default=0)
    ap.add_argument("--flags", default="nt")
    ap.add_argument("--lds", type=int, default=90000)
    ap.add_argument("--minvgpr", type=int, default=0)
    ap.add_argument("--diag", type=int, default=0)
    ap.add_argument("-o", default="cdna_kernels/" + NAME + ".s")
    p = ap.parse_args()
    p.flags = (" " + p.flags.replace(",", " ")) if p.flags else ""
    open(p.o, "w").write(gen(p))
```

```python
import sys, re, argparse

NAME = "standalone__softmax_full_bidir__decode"

HEADER = """; Kernarg layout for this problem (48 bytes, ptrs only, base s[0:1]):
"""

class E:
    def __init__(self):
        self.lines = []
    def __call__(self, s):
        self.lines.append("    " + s)
    def label(self, s):
        self.lines.append(s + ":")
    def c(self, s):
        self.lines.append("    ; " + s)
    def text(self):
        return "\n".join(self.lines) + "\n"

def vr(a, n=1):
    return f"v{a}" if n == 1 else f"v[{a}:{a+n-1}]"

def gen(p):
    NW = p.nw
    NS = p.ns
    CH = p.ch
    G = CH // 4
    flags = p.flags
    NWG = 64 * NS
    keys_wg = 16384 // NS
    bytes_wg = keys_wg * 256
    chunk_bytes = CH * 1024
    iters = bytes_wg // (chunk_bytes * NW)
    assert iters * chunk_bytes * NW == bytes_wg
    step = chunk_bytes * NW
    RING = 2 * CH
    assert RING - 1 <= 63
    CSC = 0x3E029558
    import struct, math
    cval = (128 ** -0.5) * math.log2(math.e)
    CSC = struct.unpack("<I", struct.pack("<f", cval))[0]

    vLane = 1
    vOff = 2
    vQ = 4
    vMask = 8
    vAcc = 12
    vA0 = 16
    vA1 = 20
    vS = 24
    vL = 28
    vT = 29
    vT2 = 30
    vAl = 31
    vU = 32
    vP = vU + G
    vK = (vP + G + 3) // 4 * 4
    vV = vK + 4 * CH
    vEnd = vV + 4 * CH
    nvgpr = vEnd

    sK = 16
    sV = 20
    sQ = 24
    sO = 28
    sD = 32
    sW = 36
    sIt = 40
    sCnt = 41
    sM = 42
    sC = 43
    sHead = 44
    sSplit = 45
    sWave = 46
    sTmp = 47
    sMC = 48
    sT2 = 49

    e = E()
    def stamp(i):
        if p.diag:
            e(f"s_memrealtime s[{60+2*i}:{61+2*i}]")
    def dump_stamps():
        if not p.diag:
            return
        if p.diag == 2:
            e("s_waitcnt lgkmcnt(0) vmcnt(0)")
            e("s_mov_b64 exec, -1")
            e(f"v_mov_b32 v{vT}, 0")
            sel = [(0, True), (0, False), (1, False), (2, False), (3, False), (4, True), (4, False), (5, True), (5, False), (6, False), (9, False), (11, False)]
            for lane, (i, inv) in enumerate(sel):
                if inv:
                    e(f"s_not_b32 s58, s{60+2*i}")
                    e(f"v_writelane_b32 v{vT}, s58, {lane}")
                else:
                    e(f"v_writelane_b32 v{vT}, s{60+2*i}, {lane}")
            e(f"v_lshlrev_b32 v{vT2}, 2, v{vLane}")
            e("s_mov_b64 exec, 0xfff")
            e(f"buffer_atomic_umax v{vT}, v{vT2}, s[{sD}:{sD+3}], 0 offen")
            return
        e("s_waitcnt lgkmcnt(0) vmcnt(0)")
        e("s_mov_b64 exec, 1")
        e(f"s_mul_i32 s{sTmp}, s2, {NW}")
        e(f"s_add_u32 s{sTmp}, s{sTmp}, s{sWave}")
        e(f"s_lshl_b32 s{sTmp}, s{sTmp}, 6")
        e(f"s_add_u32 s{sTmp}, s{sTmp}, 0x100000")
        e(f"s_mov_b32 s{sW+2}, 0x1000000")
        e(f"v_mov_b32 v{vT}, 0")
        for i in range(12):
            e(f"v_mov_b32 v{vK+i}, s{60+2*i}")
        e(f"s_getreg_b32 s58, hwreg(HW_REG_XCC_ID)")
        e(f"s_getreg_b32 s59, hwreg(HW_REG_HW_ID)")
        e(f"v_mov_b32 v{vK+12}, s58")
        e(f"v_mov_b32 v{vK+13}, s59")
        e(f"v_mov_b32 v{vK+14}, s2")
        e(f"v_mov_b32 v{vK+15}, s{sWave}")
        for i in range(4):
            e(f"buffer_store_dwordx4 {vr(vK+4*i,4)}, v{vT}, s[{sW}:{sW+3}], s{sTmp} offen offset:{16*i}")
    if p.diag:
        for i in range(60, 84):
            e(f"s_mov_b32 s{i}, 0")
    stamp(0)
    e("s_load_dwordx4 s[4:7], s[0:1], 0")
    e("s_load_dwordx4 s[8:11], s[0:1], 16")
    e("s_load_dwordx4 s[12:15], s[0:1], 32")
    e(f"s_cmp_ge_u32 s2, {NWG}")
    e("s_cbranch_scc1 L_end")
    lg = NS.bit_length() - 1
    if p.map == 0:
        e(f"s_lshr_b32 s{sHead}, s2, {lg}")
        e(f"s_and_b32 s{sSplit}, s2, {NS-1}")
    else:
        e(f"s_and_b32 s{sHead}, s2, 63")
        e(f"s_lshr_b32 s{sSplit}, s2, 6")
    e(f"v_and_b32 v{vLane}, 63, v0")
    e(f"v_lshrrev_b32 v{vT}, 6, v0")
    e(f"v_lshlrev_b32 v{vOff}, 4, v{vLane}")
    e(f"v_readfirstlane_b32 s{sWave}, v{vT}")
    e(f"s_lshl_b32 s{sTmp}, s{sHead}, 22")
    e(f"s_mul_i32 s{sT2}, s{sSplit}, {bytes_wg}")
    e(f"s_add_u32 s{sTmp}, s{sTmp}, s{sT2}")
    if p.inter == 0:
        e(f"s_mul_i32 s{sIt}, s{sWave}, {chunk_bytes}")
        tstride = 1024
    else:
        e(f"s_lshl_b32 s{sIt}, s{sWave}, {10 + p.inter - 1}")
        tstride = None
    e(f"v_and_b32 v{vT2}, 15, v{vLane}")
    e(f"v_lshlrev_b32 v{vT2}, 4, v{vT2}")
    e(f"s_lshl_b32 s{sT2}, s{sHead}, 8")
    e(f"s_mov_b32 s{sK+2}, {bytes_wg}")
    e(f"s_mov_b32 s{sK+3}, 0x00020000")
    e(f"s_mov_b32 s{sV+2}, {bytes_wg}")
    e(f"s_mov_b32 s{sV+3}, 0x00020000")
    e(f"s_mov_b32 s{sQ+2}, 16384")
    e(f"s_mov_b32 s{sQ+3}, 0x00020000")
    e("s_waitcnt lgkmcnt(0)")
    stamp(1)
    e(f"s_mov_b32 s{sQ}, s4")
    e(f"s_mov_b32 s{sQ+1}, s5")
    e(f"s_add_u32 s{sK}, s6, s{sTmp}")
    e(f"s_addc_u32 s{sK+1}, s7, 0")
    e(f"s_add_u32 s{sV}, s8, s{sTmp}")
    e(f"s_addc_u32 s{sV+1}, s9, 0")
    e(f"buffer_load_dwordx4 {vr(vQ,4)}, v{vT2}, s[{sQ}:{sQ+3}], s{sT2} offen")

    def load_off(t):
        if p.inter == 0:
            return t * 1024
        gran = 1 << (p.inter - 1)
        return (t // gran) * gran * 1024 * NW + (t % gran) * 1024

    def issue(srd, dst, t, extra):
        off = load_off(t) + extra
        imm = off & 0xC00 if True else 0
        hi = off - imm
        if hi == 0:
            so = f"s{sIt}"
        else:
            if issue.cur != (hi,):
                e(f"s_add_u32 s{sTmp}, s{sIt}, {hi}")
                issue.cur = (hi,)
            so = f"s{sTmp}"
        o = f" offset:{imm}" if imm else ""
        e(f"buffer_load_dwordx4 {vr(dst,4)}, v{vOff}, s[{srd}:{srd+3}], {so} offen{o}{flags}")
    issue.cur = None

    for t in range(CH):
        issue(sK, vK + 4 * t, t, 0)
    issue.cur = None
    for t in range(CH):
        issue(sV, vV + 4 * t, t, 0)
    issue.cur = None

    e(f"s_mov_b32 s{sO}, s10")
    e(f"s_mov_b32 s{sO+1}, s11")
    e(f"s_mov_b32 s{sO+2}, 16384")
    e(f"s_mov_b32 s{sO+3}, 0x00020000")
    e(f"s_mov_b32 s{sD}, s12")
    e(f"s_mov_b32 s{sD+1}, s13")
    e(f"s_mov_b32 s{sD+2}, 256")
    e(f"s_mov_b32 s{sD+3}, 0x00020000")
    e(f"s_mov_b32 s{sW}, s14")
    e(f"s_mov_b32 s{sW+1}, s15")
    e(f"s_mov_b32 s{sW+2}, {NWG*1024}")
    e(f"s_mov_b32 s{sW+3}, 0x00020000")
    e(f"s_mov_b32 s{sC}, 0x{CSC:08x}")
    e(f"s_mov_b32 s{sM}, 0xff7fffff")
    e(f"s_mov_b32 s{sCnt}, {iters}")
    e(f"v_and_b32 v{vT}, 15, v{vLane}")
    e(f"v_and_b32 v{vT2}, 1, v{vLane}")
    e(f"v_lshlrev_b32 v{vT2}, 4, v{vT2}")
    e(f"v_mov_b32 v{vAl}, 0xffff")
    e(f"v_lshlrev_b32 v{vAl}, v{vT2}, v{vAl}")
    e(f"v_lshrrev_b32 v{vT}, 1, v{vT}")
    for r in range(4):
        e(f"v_cmp_eq_u32 vcc, {r}, v{vT}")
        e("s_nop 1")
        e(f"v_cndmask_b32 v{vMask+r}, 0, v{vAl}, vcc")
    for r in range(4):
        e(f"v_mov_b32 v{vAcc+r}, 0")
    e(f"v_mov_b32 v{vL}, 0")

    W = RING - 1
    if p.diag:
        stamp(2)
        e(f"s_waitcnt vmcnt({W})")
        stamp(3)
    e.label("L_loop")
    for g in range(G):
        for b in range(4):
            t = 4 * g + b
            k = vK + 4 * t
            e(f"s_waitcnt vmcnt({W})")
            e(f"v_dot2_f32_bf16 v{vS+b}, v{k}, v{vQ}, 0")
            for r in range(1, 4):
                e(f"v_dot2_f32_bf16 v{vS+b}, v{k+r}, v{vQ+r}, v{vS+b}")
            issue(sK, k, t, step)
        e("s_nop 1")
        u = vU + g
        e(f"v_add_f32_dpp v{vS+0}, v{vS+0}, v{vS+0} row_mirror row_mask:0xf bank_mask:0x3")
        e(f"v_add_f32_dpp v{vS+1}, v{vS+1}, v{vS+1} row_mirror row_mask:0xf bank_mask:0x3")
        e(f"v_add_f32_dpp v{vS+0}, v{vS+2}, v{vS+2} row_mirror row_mask:0xf bank_mask:0xc")
        e(f"v_add_f32_dpp v{vS+1}, v{vS+3}, v{vS+3} row_mirror row_mask:0xf bank_mask:0xc")
        e("s_nop 0")
        e(f"v_add_f32_dpp v{u}, v{vS+0}, v{vS+0} row_half_mirror row_mask:0xf bank_mask:0x5")
        e(f"v_add_f32_dpp v{u}, v{vS+1}, v{vS+1} row_half_mirror row_mask:0xf bank_mask:0xa")
        e("s_nop 1")
        e(f"v_add_f32_dpp v{u}, v{u}, v{u} quad_perm:[1,0,3,2] row_mask:0xf bank_mask:0xf")
        e("s_nop 1")
        e(f"v_add_f32_dpp v{u}, v{u}, v{u} quad_perm:[2,3,0,1] row_mask:0xf bank_mask:0xf")
    issue.cur = None
    e(f"v_mov_b32 v{vT}, s{sM}")
    g = 0
    while g < G:
        if g + 1 < G:
            e(f"v_max3_f32 v{vT}, v{vT}, v{vU+g}, v{vU+g+1}")
            g += 2
        else:
            e(f"v_max_f32 v{vT}, v{vT}, v{vU+g}")
            g += 1
    e("s_nop 1")
    e(f"v_max_f32_dpp v{vT}, v{vT}, v{vT} row_half_mirror row_mask:0xf bank_mask:0xf")
    e("s_nop 1")
    e(f"v_max_f32_dpp v{vT}, v{vT}, v{vT} row_mirror row_mask:0xf bank_mask:0xf")
    e("s_nop 1")
    e(f"v_max_f32_dpp v{vT}, v{vT}, v{vT} row_bcast:15 row_mask:0xa bank_mask:0xf")
    e("s_nop 1")
    e(f"v_max_f32_dpp v{vT}, v{vT}, v{vT} row_bcast:31 row_mask:0xc bank_mask:0xf")
    e(f"v_mov_b32 v{vAl}, s{sM}")
    e(f"v_readlane_b32 s{sM}, v{vT}, 63")
    e("s_nop 1")
    e(f"v_subrev_f32 v{vAl}, s{sM}, v{vAl}")
    e(f"v_mov_b32 v{vT}, s{sM}")
    e(f"v_mul_f32 v{vAl}, s{sC}, v{vAl}")
    e(f"v_mul_f32 v{vT}, s{sC}, v{vT}")
    e(f"v_exp_f32 v{vAl}, v{vAl}")
    for g in range(G):
        e(f"v_fma_f32 v{vU+g}, v{vU+g}, s{sC}, -v{vT}")
    for g in range(G):
        e(f"v_exp_f32 v{vU+g}, v{vU+g}")
    for r in range(4):
        e(f"v_mul_f32 v{vAcc+r}, v{vAcc+r}, v{vAl}")
    e(f"v_mul_f32 v{vL}, v{vL}, v{vAl}")
    for g in range(G):
        e(f"v_cvt_pk_bf16_f32 v{vP+g}, v{vU+g}, v{vU+g}")
    for g in range(G):
        e(f"v_and_b32 v{vU+g}, 0xffff0000, v{vP+g}")
    for g in range(G):
        e(f"v_add_f32 v{vL}, v{vL}, v{vU+g}")
    for t in range(CH):
        g, b = t // 4, t % 4
        A = vA0 if t % 2 == 0 else vA1
        for r in range(4):
            e(f"v_and_b32_dpp v{A+r}, v{vP+g}, v{vMask+r} row_newbcast:{4*b} row_mask:0xf bank_mask:0xf")
        e(f"s_waitcnt vmcnt({W})")
        e("s_nop 0")
        e(f"v_mfma_f32_16x16x32_bf16 {vr(vAcc,4)}, {vr(A,4)}, {vr(vV+4*t,4)}, {vr(vAcc,4)}")
        issue(sV, vV + 4 * t, t, step)
    issue.cur = None
    e(f"s_add_u32 s{sIt}, s{sIt}, {step}")
    if p.diag:
        e(f"s_cmp_lg_u32 s{sCnt}, {iters}")
        e("s_cbranch_scc1 L_nostamp")
        stamp(4)
        e.label("L_nostamp")
    e(f"s_sub_u32 s{sCnt}, s{sCnt}, 1")
    e(f"s_cmp_lg_u32 s{sCnt}, 0")
    e("s_cbranch_scc1 L_loop")

    stamp(5)
    e(f"v_add_f32_dpp v{vL}, v{vL}, v{vL} row_half_mirror row_mask:0xf bank_mask:0xf")
    e("s_nop 1")
    e(f"v_add_f32_dpp v{vL}, v{vL}, v{vL} row_mirror row_mask:0xf bank_mask:0xf")
    e("s_nop 1")
    e(f"v_add_f32_dpp v{vL}, v{vL}, v{vL} row_bcast:15 row_mask:0xa bank_mask:0xf")
    e("s_nop 1")
    e(f"v_add_f32_dpp v{vL}, v{vL}, v{vL} row_bcast:31 row_mask:0xc bank_mask:0xf")
    e("s_nop 1")
    e(f"v_readlane_b32 s{sTmp}, v{vL}, 63")
    e(f"v_and_b32 v{vT}, 15, v{vLane}")
    e(f"v_lshlrev_b32 v{vT}, 5, v{vT}")
    e(f"v_lshrrev_b32 v{vT2}, 4, v{vLane}")
    e(f"v_lshl_add_u32 v{vT}, v{vT2}, 4, v{vT}")
    e(f"s_lshl_b32 s{sT2}, s{sWave}, 9")
    e(f"v_add_u32 v{vT}, s{sT2}, v{vT}")
    e(f"v_mov_b32 v{vA0}, s{sM}")
    e(f"v_mov_b32 v{vA0+1}, s{sTmp}")
    e(f"s_lshl_b32 s{sT2}, s{sWave}, 3")
    e(f"v_mov_b32 v{vT2}, s{sT2}")
    e("s_mov_b32 exec_hi, 0")
    e(f"ds_write_b128 v{vT}, {vr(vAcc,4)}")
    e("s_mov_b64 exec, 1")
    e(f"ds_write_b64 v{vT2}, {vr(vA0,2)} offset:{NW*512}")
    e("s_mov_b64 exec, -1")
    e("s_waitcnt lgkmcnt(0)")
    e("s_barrier")
    stamp(6)
    e(f"s_cmp_lg_u32 s{sWave}, 0")
    e("s_cbranch_scc1 L_fin")
    e("s_waitcnt vmcnt(0)")
    R = vK
    ML = R
    OO = R + 2 * NW
    e(f"v_mov_b32 v{vT}, 0")
    e(f"v_lshlrev_b32 v{vT2}, 3, v{vLane}")
    for w in range(0, NW, 2):
        e(f"ds_read_b128 {vr(ML+2*w,4)}, v{vT} offset:{NW*512 + w*8}")
    for w in range(NW):
        e(f"ds_read_b64 {vr(OO+2*w,2)}, v{vT2} offset:{w*512}")
    e("s_waitcnt lgkmcnt(0)")

    def combine(n, mreg, lreg, oreg, dst):
        M = dst + 2
        e(f"v_mov_b32 v{M}, v{mreg(0)}")
        for w in range(1, n):
            e(f"v_max_f32 v{M}, v{M}, v{mreg(w)}")
        for w in range(n):
            e(f"v_sub_f32 v{mreg(w)}, v{mreg(w)}, v{M}")
        for w in range(n):
            e(f"v_mul_f32 v{mreg(w)}, s{sC}, v{mreg(w)}")
        for w in range(n):
            e(f"v_exp_f32 v{mreg(w)}, v{mreg(w)}")
        e("s_nop 0")
        e(f"v_mul_f32 v{dst}, v{mreg(0)}, v{oreg(0)}")
        e(f"v_mul_f32 v{dst+1}, v{mreg(0)}, v{oreg(0)+1}")
        e(f"v_mul_f32 v{dst+3}, v{mreg(0)}, v{lreg(0)}")
        for w in range(1, n):
            e(f"v_fmac_f32 v{dst}, v{mreg(w)}, v{oreg(w)}")
            e(f"v_fmac_f32 v{dst+1}, v{mreg(w)}, v{oreg(w)+1}")
            e(f"v_fmac_f32 v{dst+3}, v{mreg(w)}, v{lreg(w)}")

    combine(NW, lambda w: ML + 2 * w, lambda w: ML + 2 * w + 1, lambda w: OO + 2 * w, vA0)
    e(f"s_lshl_b32 s{sT2}, s{sHead}, {10+lg}")
    e(f"s_lshl_b32 s{sTmp}, s{sSplit}, 10")
    e(f"s_add_u32 s{sTmp}, s{sTmp}, s{sT2}")
    e(f"buffer_store_dwordx4 {vr(vA0,4)}, v{vOff}, s[{sW}:{sW+3}], s{sTmp} offen sc1")
    if p.diag == 2:
        e(f"s_lshr_b32 s{sTmp}, s{sHead}, 1")
        e(f"s_lshl_b32 s{sTmp}, s{sTmp}, 2")
        e(f"s_add_u32 s{sTmp}, s{sTmp}, 128")
        e(f"s_and_b32 s57, s{sHead}, 1")
        e(f"s_lshl_b32 s57, s57, 4")
        e(f"s_lshl_b32 s56, 1, s57")
        e(f"v_mov_b32 v{vT}, s56")
    else:
        e(f"s_lshl_b32 s{sTmp}, s{sHead}, 2")
        e(f"v_mov_b32 v{vT}, 1")
    e(f"v_mov_b32 v{vT2}, s{sTmp}")
    stamp(7)
    e("s_waitcnt vmcnt(0)")
    stamp(8)
    e("s_mov_b64 exec, 1")
    e(f"buffer_atomic_add v{vT}, v{vT2}, s[{sD}:{sD+3}], 0 offen sc0")
    e("s_waitcnt vmcnt(0)")
    e(f"v_readfirstlane_b32 s{sMC}, v{vT}")
    e("s_mov_b64 exec, -1")
    stamp(9)
    if p.diag == 2:
        e(f"s_lshr_b32 s{sMC}, s{sMC}, s57")
        e(f"s_and_b32 s{sMC}, s{sMC}, 0xffff")
    e(f"s_cmp_lg_u32 s{sMC}, {NS-1}")
    e("s_cbranch_scc1 L_fin")
    for s in range(NS):
        hi = (s * 1024) & ~0xFFF
        imm = (s * 1024) & 0xFFF
        e(f"s_add_u32 s{sTmp}, s{sT2}, {hi}")
        o = f" offset:{imm}" if imm else ""
        e(f"buffer_load_dwordx4 {vr(R+4*s,4)}, v{vOff}, s[{sW}:{sW+3}], s{sTmp} offen{o} sc1")
    e("s_waitcnt vmcnt(0)")
    stamp(10)
    combine(NS, lambda s: R + 4 * s + 2, lambda s: R + 4 * s + 3, lambda s: R + 4 * s, vA1)
    e(f"v_rcp_f32 v{vT}, v{vA1+3}")
    e(f"v_lshlrev_b32 v{vT2}, 2, v{vLane}")
    e(f"s_lshl_b32 s{sTmp}, s{sHead}, 8")
    e(f"v_mul_f32 v{vA1}, v{vA1}, v{vT}")
    e(f"v_mul_f32 v{vA1+1}, v{vA1+1}, v{vT}")
    e(f"v_cvt_pk_bf16_f32 v{vT}, v{vA1}, v{vA1+1}")
    e(f"buffer_store_dword v{vT}, v{vT2}, s[{sO}:{sO+3}], s{sTmp} offen")
    if p.diag:
        e("s_waitcnt vmcnt(0)")
        stamp(11)
    e.label("L_fin")
    dump_stamps()
    e.label("L_end")

    lds = NW * 512 + NW * 8
    if p.lds:
        lds = max(lds, p.lds)
    nv = max(nvgpr, p.minvgpr)
    acc = (nv + 3) // 4 * 4
    out = HEADER
    out += f"; @launch grid=({NWG},1,1) block=({NW*64},1,1) lds={lds}\n"
    out += f""".amdgcn_target "amdgcn-amd-amdhsa--gfx950"
.text
.globl {NAME}_kernel
.p2align 8
.type {NAME}_kernel,@function
{NAME}_kernel:
"""
    out += e.text()
    out += f"""s_endpgm
.section .rodata,"a"
.p2align 6
.amdhsa_kernel {NAME}_kernel
  .amdhsa_next_free_vgpr {nv}
  .amdhsa_next_free_sgpr {88 if p.diag else 56}
  .amdhsa_accum_offset {acc}
  .amdhsa_group_segment_fixed_size 0
  .amdhsa_kernarg_size 48
  .amdhsa_user_sgpr_count 2
  .amdhsa_user_sgpr_kernarg_segment_ptr 1
  .amdhsa_system_sgpr_workgroup_id_x 1
.end_amdhsa_kernel
"""
    return out

if __name__ == "__main__":
    ap = argparse.ArgumentParser()
    ap.add_argument("--nw", type=int, default=8)
    ap.add_argument("--ns", type=int, default=4)
    ap.add_argument("--ch", type=int, default=16)
    ap.add_argument("--flags", default="")
    ap.add_argument("--map", type=int, default=0)
    ap.add_argument("--inter", type=int, default=0)
    ap.add_argument("--lds", type=int, default=0)
    ap.add_argument("--minvgpr", type=int, default=0)
    ap.add_argument("--diag", type=int, default=0)
    ap.add_argument("-o", default="cdna_kernels/" + NAME + ".s")
    p = ap.parse_args()
    if p.flags:
        p.flags = " " + p.flags.replace(",", " ")
    open(p.o, "w").write(gen(p))
```

```python
import sys, re, argparse, struct, math

NAME = "standalone__softmax_full_bidir__decode"

HEADER = """; Kernarg layout for this problem (48 bytes, ptrs only, base s[0:1]):
"""

class E:
    def __init__(self):
        self.lines = []
    def __call__(self, s):
        self.lines.append("    " + s)
    def label(self, s):
        self.lines.append(s + ":")
    def c(self, s):
        self.lines.append("    ; " + s)
    def text(self):
        return "\n".join(self.lines) + "\n"

def vr(a, n=1):
    return f"v{a}" if n == 1 else f"v[{a}:{a+n-1}]"

def gen(p):
    NW, NS, CH, J = p.nw, p.ns, p.ch, p.j
    G = CH // 4
    flags = p.flags
    NWG = 64 * NS
    NWK = NS * NW
    NCH = 4096 // CH
    CB = CH * 1024
    POOL0 = J * NWK
    NPOOL = NCH - POOL0
    assert NPOOL >= 0 and J >= 3
    RING = 2 * CH
    W = (p.depth or RING) - 1
    cval = (128 ** -0.5) * math.log2(math.e)
    CSC = struct.unpack("<I", struct.pack("<f", cval))[0]
    lgNS = NS.bit_length() - 1
    lgCB = CB.bit_length() - 1
    OOB = 0x20000000
    CNT_OFF = 0x80000
    WS_BYTES = 0x100000

    vLane, vOff = 1, 2
    vAtom = 3
    vQ, vMask, vAcc, vA0, vA1, vS = 4, 8, 12, 16, 20, 24
    vL, vT, vT2, vAl = 28, 29, 30, 31
    vU = 32
    vP = vU + G
    vCo = vP + G
    vKoff = vCo + 2
    vK = (vCo + 3 + 3) // 4 * 4
    vV = vK + 4 * CH
    nvgpr = vV + 4 * CH

    sK, sV, sQ, sO, sD, sW = 8, 12, 16, 20, 24, 28
    sNext, sN, sM, sC, sHead, sSplit, sWave, sTmp, sIdx, sT2, sBase, sStat = range(32, 44)
    sCA, sAt = 44, 46
    sRot = 47
    sAt2, sShift = 48, 49

    e = E()
    def stamp(i):
        if p.diag:
            e(f"s_memrealtime s[{60+2*i}:{61+2*i}]")
    if p.diag:
        for i in range(60, 84):
            e(f"s_mov_b32 s{i}, 0")
    stamp(0)
    e(f"s_load_dwordx2 s[{sK}:{sK+1}], s[0:1], 8")
    e(f"s_load_dwordx2 s[{sV}:{sV+1}], s[0:1], 16")
    e(f"s_load_dwordx2 s[{sQ}:{sQ+1}], s[0:1], 0")
    e(f"s_load_dwordx2 s[{sO}:{sO+1}], s[0:1], 24")
    e(f"s_load_dwordx2 s[{sD}:{sD+1}], s[0:1], 32")
    e(f"s_load_dwordx2 s[{sW}:{sW+1}], s[0:1], 40")
    e(f"s_cmp_ge_u32 s2, {NWG}")
    e("s_cbranch_scc1 L_end")
    e(f"v_lshrrev_b32 v{vT}, 6, v0")
    e(f"v_and_b32 v{vLane}, 63, v0")
    e(f"s_lshr_b32 s{sHead}, s2, {lgNS}")
    e(f"v_readfirstlane_b32 s{sWave}, v{vT}")
    e(f"s_and_b32 s{sSplit}, s2, {NS-1}")
    e(f"v_lshlrev_b32 v{vOff}, 4, v{vLane}")
    RS = p.rs
    if RS:
        assert RS >= CH * 256
        SUB = RS // (CH * 256)
        lgSUB = SUB.bit_length() - 1
        lgBLK = (4 * RS).bit_length() - 1
        assert NWK % SUB == 0 or p.spat == 1
        e(f"v_lshrrev_b32 v{vKoff}, 4, v{vLane}")
        e(f"v_lshlrev_b32 v{vKoff}, {RS.bit_length()-1}, v{vKoff}")
        e(f"v_and_b32 v{vT2}, 0xf0, v{vOff}")
        e(f"v_or_b32 v{vKoff}, v{vKoff}, v{vT2}")
    def chunk_to_bytes(sreg):
        if RS and SUB > 1:
            e(f"s_and_b32 s{sT2}, s{sreg}, {SUB-1}")
            e(f"s_lshr_b32 s{sreg}, s{sreg}, {lgSUB}")
            e(f"s_lshl_b32 s{sreg}, s{sreg}, {lgBLK}")
            e(f"s_lshl_b32 s{sT2}, s{sT2}, {(CH*256).bit_length()-1}")
            e(f"s_add_u32 s{sreg}, s{sreg}, s{sT2}")
        else:
            e(f"s_lshl_b32 s{sreg}, s{sreg}, {lgCB}")
    e(f"s_lshl_b32 s{sBase}, s{sHead}, 22")
    if p.spat == 0:
        e(f"s_mul_i32 s{sTmp}, s{sSplit}, {NW}")
        sstat_step = NWK * CB
    elif p.spat == 1:
        e(f"s_mul_i32 s{sTmp}, s{sSplit}, {J*NW}")
        sstat_step = NW * CB
    if p.spat == 2:
        e(f"s_mul_i32 s{sTmp}, s{sWave}, {NS}")
        e(f"s_add_u32 s{sTmp}, s{sTmp}, s{sSplit}")
        sstat_step = NWK * CB
    else:
        e(f"s_add_u32 s{sTmp}, s{sTmp}, s{sWave}")
    chunk_to_bytes(sTmp)
    if p.rot:
        e(f"s_mul_i32 s{sRot}, s{sHead}, {p.rot*1024}")
        e(f"s_add_u32 s{sStat}, s{sRot}, s{sTmp}")
        e(f"s_and_b32 s{sTmp}, s{sStat}, 0x3fffff")
    e(f"s_add_u32 s{sNext}, s{sBase}, s{sTmp}")
    e(f"s_mov_b32 s{sK+2}, 0x10000000")
    e(f"s_mov_b32 s{sK+3}, 0x00020000")
    e(f"s_mov_b32 s{sV+2}, 0x10000000")
    e(f"s_mov_b32 s{sV+3}, 0x00020000")
    e(f"s_mov_b32 s{sQ+2}, 16384")
    e(f"s_mov_b32 s{sQ+3}, 0x00020000")
    e(f"v_and_b32 v{vT2}, 0xf0, v{vOff}")
    e(f"s_lshl_b32 s{sT2}, s{sHead}, 8")
    e(f"s_cmp_eq_u32 s{sWave}, {NW}")
    e("s_cbranch_scc1 L_helper")
    e("s_waitcnt lgkmcnt(0)")
    stamp(1)

    def issue(srd, dst, t):
        off = t * (256 if p.rs else 1024)
        imm = off & 0xF00
        hi = off - imm
        if hi == 0:
            so = f"s{sNext}"
        else:
            if issue.cur != hi:
                e(f"s_add_u32 s{sTmp}, s{sNext}, {hi}")
                issue.cur = hi
            so = f"s{sTmp}"
        o = f" offset:{imm}" if imm else ""
        e(f"buffer_load_dwordx4 {vr(dst,4)}, v{vKoff if p.rs else vOff}, s[{srd}:{srd+3}], {so} offen{o}{flags}")
    issue.cur = None

    e(f"buffer_load_dwordx4 {vr(vQ,4)}, v{vT2}, s[{sQ}:{sQ+3}], s{sT2} offen")
    for t in range(CH):
        issue(sK, vK + 4 * t, t)
    issue.cur = None
    for t in range(CH):
        issue(sV, vV + 4 * t, t)
    issue.cur = None

    def other_srds():
        e(f"s_mov_b32 s{sD+2}, 256")
        e(f"s_mov_b32 s{sD+3}, 0x00020000")
        e(f"s_mov_b32 s{sW+2}, {WS_BYTES}")
        e(f"s_mov_b32 s{sW+3}, 0x00020000")
        e(f"s_lshl_b32 s{sTmp}, s{sHead}, 8")
        e(f"s_add_u32 s{sTmp}, s{sTmp}, {CNT_OFF}")
        e(f"v_mov_b32 v{vCo}, s{sTmp}")
        e(f"s_lshl_b32 s{sTmp}, s{sHead}, 2")
        e(f"v_mov_b32 v{vCo+1}, s{sTmp}")
    other_srds()
    if p.satom:
        e(f"s_lshl_b32 s{sTmp}, s{sHead}, 8")
        e(f"s_add_u32 s{sTmp}, s{sTmp}, {CNT_OFF}")
        e(f"s_add_u32 s{sCA}, s{sW}, s{sTmp}")
        e(f"s_addc_u32 s{sCA+1}, s{sW+1}, 0")
    e(f"s_mov_b32 s{sO+2}, 16384")
    e(f"s_mov_b32 s{sO+3}, 0x00020000")
    e(f"s_mov_b32 s{sC}, 0x{CSC:08x}")
    e(f"s_mov_b32 s{sM}, 0xff7fffff")
    e(f"s_mov_b32 s{sN}, 0")
    e(f"s_mov_b32 s{sShift}, 0")
    if p.rot:
        e(f"s_add_u32 s{sRot}, s{sRot}, {POOL0*CB}")
    else:
        e(f"s_add_u32 s{sBase}, s{sBase}, {POOL0*CB}")
    e(f"v_and_b32 v{vT}, 15, v{vLane}")
    e(f"v_and_b32 v{vT2}, 1, v{vLane}")
    e(f"v_lshlrev_b32 v{vT2}, 4, v{vT2}")
    e(f"v_mov_b32 v{vAl}, 0xffff")
    e(f"v_lshlrev_b32 v{vAl}, v{vT2}, v{vAl}")
    e(f"v_lshrrev_b32 v{vT}, 1, v{vT}")
    for r in range(4):
        e(f"v_cmp_eq_u32 vcc, {r}, v{vT}")
        e("s_nop 1")
        e(f"v_cndmask_b32 v{vMask+r}, 0, v{vAl}, vcc")
    for r in range(4):
        e(f"v_mov_b32 v{vAcc+r}, 0")
    e(f"v_mov_b32 v{vL}, 0")
    stamp(2)

    e.label("L_loop")
    e(f"s_waitcnt vmcnt({W})")
    e(f"s_cmp_lt_u32 s{sN}, {J-4 if p.la2 else J-3}")
    e("s_cbranch_scc0 L_dyn")
    def static_next():
        if p.rot:
            e(f"s_add_u32 s{sStat}, s{sStat}, {sstat_step}")
            e(f"s_and_b32 s{sTmp}, s{sStat}, 0x3fffff")
            e(f"s_add_u32 s{sNext}, s{sBase}, s{sTmp}")
        else:
            e(f"s_add_u32 s{sNext}, s{sNext}, {sstat_step}")
    static_next()
    e.label("L_body")
    for g in range(G):
        for b in range(4):
            t = 4 * g + b
            k = vK + 4 * t
            if t:
                e(f"s_waitcnt vmcnt({W})")
            e(f"v_dot2_f32_bf16 v{vS+b}, v{k}, v{vQ}, 0")
            for r in range(1, 4):
                e(f"v_dot2_f32_bf16 v{vS+b}, v{k+r}, v{vQ+r}, v{vS+b}")
            issue(sK, k, t)
        e("s_nop 1")
        u = vU + g
        e(f"v_add_f32_dpp v{vS+0}, v{vS+0}, v{vS+0} row_mirror row_mask:0xf bank_mask:0x3")
        e(f"v_add_f32_dpp v{vS+1}, v{vS+1}, v{vS+1} row_mirror row_mask:0xf bank_mask:0x3")
        e(f"v_add_f32_dpp v{vS+0}, v{vS+2}, v{vS+2} row_mirror row_mask:0xf bank_mask:0xc")
        e(f"v_add_f32_dpp v{vS+1}, v{vS+3}, v{vS+3} row_mirror row_mask:0xf bank_mask:0xc")
        e("s_nop 0")
        e(f"v_add_f32_dpp v{u}, v{vS+0}, v{vS+0} row_half_mirror row_mask:0xf bank_mask:0x5")
        e(f"v_add_f32_dpp v{u}, v{vS+1}, v{vS+1} row_half_mirror row_mask:0xf bank_mask:0xa")
        e("s_nop 1")
        e(f"v_add_f32_dpp v{u}, v{u}, v{u} quad_perm:[1,0,3,2] row_mask:0xf bank_mask:0xf")
        e("s_nop 1")
        e(f"v_add_f32_dpp v{u}, v{u}, v{u} quad_perm:[2,3,0,1] row_mask:0xf bank_mask:0xf")
    issue.cur = None
    if p.la2:
        e(f"s_cmp_lg_u32 s{sShift}, 0")
        e("s_cbranch_scc1 L_mid")
        e.label("L_midret")
    e(f"v_mov_b32 v{vT}, s{sM}")
    g = 0
    while g < G:
        if g + 1 < G:
            e(f"v_max3_f32 v{vT}, v{vT}, v{vU+g}, v{vU+g+1}")
            g += 2
        else:
            e(f"v_max_f32 v{vT}, v{vT}, v{vU+g}")
            g += 1
    e("s_nop 1")
    e(f"v_max_f32_dpp v{vT}, v{vT}, v{vT} row_half_mirror row_mask:0xf bank_mask:0xf")
    e("s_nop 1")
    e(f"v_max_f32_dpp v{vT}, v{vT}, v{vT} row_mirror row_mask:0xf bank_mask:0xf")
    e("s_nop 1")
    e(f"v_max_f32_dpp v{vT}, v{vT}, v{vT} row_bcast:15 row_mask:0xa bank_mask:0xf")
    e("s_nop 1")
    e(f"v_max_f32_dpp v{vT}, v{vT}, v{vT} row_bcast:31 row_mask:0xc bank_mask:0xf")
    e(f"v_mov_b32 v{vAl}, s{sM}")
    e(f"v_readlane_b32 s{sM}, v{vT}, 63")
    e("s_nop 1")
    e(f"v_subrev_f32 v{vAl}, s{sM}, v{vAl}")
    e(f"v_mov_b32 v{vT}, s{sM}")
    e(f"v_mul_f32 v{vAl}, s{sC}, v{vAl}")
    e(f"v_mul_f32 v{vT}, s{sC}, v{vT}")
    e(f"v_exp_f32 v{vAl}, v{vAl}")
    for g in range(G):
        e(f"v_fma_f32 v{vU+g}, v{vU+g}, s{sC}, -v{vT}")
    for g in range(G):
        e(f"v_exp_f32 v{vU+g}, v{vU+g}")
    for r in range(4):
        e(f"v_mul_f32 v{vAcc+r}, v{vAcc+r}, v{vAl}")
    e(f"v_mul_f32 v{vL}, v{vL}, v{vAl}")
    for g in range(G):
        e(f"v_cvt_pk_bf16_f32 v{vP+g}, v{vU+g}, v{vU+g}")
    for g in range(G):
        e(f"v_and_b32 v{vU+g}, 0xffff0000, v{vP+g}")
    for g in range(G):
        e(f"v_add_f32 v{vL}, v{vL}, v{vU+g}")
    if G == 1:
        e("s_nop 0")
    for t in range(CH):
        g, b = t // 4, t % 4
        A = vA0 if t % 2 == 0 else vA1
        for r in range(4):
            e(f"v_and_b32_dpp v{A+r}, v{vP+g}, v{vMask+r} row_newbcast:{4*b} row_mask:0xf bank_mask:0xf")
        e(f"s_waitcnt vmcnt({W})")
        e("s_nop 0")
        e(f"v_mfma_f32_16x16x32_bf16 {vr(vAcc,4)}, {vr(A,4)}, {vr(vV+4*t,4)}, {vr(vAcc,4)}")
        issue(sV, vV + 4 * t, t)
    issue.cur = None
    e(f"s_add_u32 s{sN}, s{sN}, 1")
    e(f"s_cmp_lt_u32 s{sNext}, {OOB}")
    e("s_cbranch_scc1 L_loop")
    e("s_branch L_epi")

    e.label("L_dyn")
    if p.la2:
        assert p.satom
        e(f"s_cmp_gt_u32 s{sN}, {J-2}")
        e("s_cbranch_scc1 L_dyn2")
        static_next()
        e(f"s_cmp_eq_u32 s{sN}, {J-2}")
        e("s_cbranch_scc1 L_shift")
        e(f"s_cmp_eq_u32 s{sN}, {J-3}")
        e("s_cbranch_scc1 L_dyn1")
        e("s_mov_b64 exec, 1")
        e(f"buffer_load_dword v{vAtom}, v{vCo+1}, s[{sD}:{sD+3}], 0 offen sc1")
        e("s_mov_b64 exec, -1")
        e("s_branch L_body")
        e.label("L_dyn1")
        e(f"v_readfirstlane_b32 s{sIdx}, v{vAtom}")
        e(f"s_bitcmp1_b32 s{sIdx}, 8")
        e("s_cbranch_scc1 L_deq")
        e.label("L_spin")
        e("s_sleep 8")
        e("s_mov_b64 exec, 1")
        e(f"buffer_load_dword v{vAtom}, v{vCo+1}, s[{sD}:{sD+3}], 0 offen sc1")
        e("s_mov_b64 exec, -1")
        e("s_waitcnt vmcnt(0)")
        e(f"v_readfirstlane_b32 s{sIdx}, v{vAtom}")
        e(f"s_bitcmp1_b32 s{sIdx}, 8")
        e("s_cbranch_scc0 L_spin")
        e("s_branch L_deq")
        e.label("L_dyn2")
        e(f"s_mov_b32 s{sIdx}, s{sAt2}")
        e(f"s_cmp_ge_u32 s{sIdx}, {NPOOL}")
        e("s_cbranch_scc1 L_dry")
        chunk_to_bytes(sIdx)
        if p.rot:
            e(f"s_add_u32 s{sIdx}, s{sIdx}, s{sRot}")
            e(f"s_and_b32 s{sIdx}, s{sIdx}, 0x3fffff")
        e(f"s_add_u32 s{sNext}, s{sBase}, s{sIdx}")
        e.label("L_shift")
        e(f"s_mov_b32 s{sShift}, 1")
        e("s_branch L_body")
        e.label("L_deq")
        e(f"s_mov_b32 s{sAt}, 1")
        e(f"s_atomic_add s{sAt}, s[{sCA}:{sCA+1}], 0 glc")
        e("s_branch L_body")
        e.label("L_dry")
        e(f"s_mov_b32 s{sNext}, {OOB}")
        e(f"s_mov_b32 s{sShift}, 0")
        e("s_branch L_body")
        e.label("L_mid")
        e("s_waitcnt lgkmcnt(0)")
        e(f"s_mov_b32 s{sAt2}, s{sAt}")
        e(f"s_mov_b32 s{sAt}, 1")
        e(f"s_atomic_add s{sAt}, s[{sCA}:{sCA+1}], 0 glc")
        e("s_branch L_midret")
    else:
        e(f"s_cmp_gt_u32 s{sN}, {J-2}")
        e("s_cbranch_scc1 L_dyn2")
        static_next()
        e(f"s_cmp_eq_u32 s{sN}, {J-2}")
        e("s_cbranch_scc1 L_dyn1")
        e("s_mov_b64 exec, 1")
        e(f"buffer_load_dword v{vAtom}, v{vCo+1}, s[{sD}:{sD+3}], 0 offen sc1")
        e("s_mov_b64 exec, -1")
        e("s_branch L_body")
        e.label("L_dyn1")
        e(f"v_readfirstlane_b32 s{sIdx}, v{vAtom}")
        e(f"s_bitcmp1_b32 s{sIdx}, 8")
        e("s_cbranch_scc1 L_deq")
        e.label("L_spin")
        e("s_sleep 8")
        e("s_mov_b64 exec, 1")
        e(f"buffer_load_dword v{vAtom}, v{vCo+1}, s[{sD}:{sD+3}], 0 offen sc1")
        e("s_mov_b64 exec, -1")
        e("s_waitcnt vmcnt(0)")
        e(f"v_readfirstlane_b32 s{sIdx}, v{vAtom}")
        e(f"s_bitcmp1_b32 s{sIdx}, 8")
        e("s_cbranch_scc0 L_spin")
        e("s_branch L_deq")
        e.label("L_dyn2")
        if p.satom:
            e("s_waitcnt lgkmcnt(0)")
            e(f"s_mov_b32 s{sIdx}, s{sAt}")
        else:
            e(f"v_readfirstlane_b32 s{sIdx}, v{vAtom}")
        e(f"s_cmp_ge_u32 s{sIdx}, {NPOOL}")
        e("s_cbranch_scc1 L_dry")
        chunk_to_bytes(sIdx)
        if p.rot:
            e(f"s_add_u32 s{sIdx}, s{sIdx}, s{sRot}")
            e(f"s_and_b32 s{sIdx}, s{sIdx}, 0x3fffff")
        e(f"s_add_u32 s{sNext}, s{sBase}, s{sIdx}")
        e.label("L_deq")
        if p.satom:
            e(f"s_mov_b32 s{sAt}, 1")
            e(f"s_atomic_add s{sAt}, s[{sCA}:{sCA+1}], 0 glc")
        else:
            e(f"v_mov_b32 v{vAtom}, 1")
            e("s_mov_b64 exec, 1")
            e(f"buffer_atomic_add v{vAtom}, v{vCo}, s[{sW}:{sW+3}], 0 offen sc0")
            e("s_mov_b64 exec, -1")
        e("s_branch L_body")
        e.label("L_dry")
        e(f"s_mov_b32 s{sNext}, {OOB}")
        e("s_branch L_body")


    e.label("L_helper")
    other_srds()
    e(f"v_mov_b32 v{vAtom}, 1")
    e("s_mov_b64 exec, 1")
    e("s_waitcnt lgkmcnt(0)")
    e(f"buffer_atomic_add v{vAtom}, v{vCo+1}, s[{sD}:{sD+3}], 0 offen sc0")
    e("s_waitcnt vmcnt(0)")
    e(f"v_readfirstlane_b32 s{sIdx}, v{vAtom}")
    e(f"s_and_b32 s{sIdx}, s{sIdx}, 0xff")
    e(f"s_cmp_lg_u32 s{sIdx}, 0")
    e("s_cbranch_scc1 L_end")
    e(f"v_mov_b32 v{vAtom}, 0")
    e(f"buffer_store_dword v{vAtom}, v{vCo}, s[{sW}:{sW+3}], 0 offen sc0 sc1")
    e(f"v_mov_b32 v{vT}, 0x100")
    e("s_waitcnt vmcnt(0)")
    e(f"buffer_atomic_add v{vT}, v{vCo+1}, s[{sD}:{sD+3}], 0 offen")
    e("s_branch L_end")

    e.label("L_epi")
    stamp(5)
    e(f"v_add_f32_dpp v{vL}, v{vL}, v{vL} row_half_mirror row_mask:0xf bank_mask:0xf")
    e("s_nop 1")
    e(f"v_add_f32_dpp v{vL}, v{vL}, v{vL} row_mirror row_mask:0xf bank_mask:0xf")
    e("s_nop 1")
    e(f"v_add_f32_dpp v{vL}, v{vL}, v{vL} row_bcast:15 row_mask:0xa bank_mask:0xf")
    e("s_nop 1")
    e(f"v_add_f32_dpp v{vL}, v{vL}, v{vL} row_bcast:31 row_mask:0xc bank_mask:0xf")
    e("s_nop 1")
    e(f"v_readlane_b32 s{sIdx}, v{vL}, 63")
    e(f"v_and_b32 v{vT}, 15, v{vLane}")
    e(f"v_lshlrev_b32 v{vT}, 5, v{vT}")
    e(f"v_lshrrev_b32 v{vT2}, 4, v{vLane}")
    e(f"v_lshl_add_u32 v{vT}, v{vT2}, 4, v{vT}")
    e(f"s_lshl_b32 s{sT2}, s{sWave}, 9")
    e(f"v_add_u32 v{vT}, s{sT2}, v{vT}")
    e(f"v_mov_b32 v{vA0}, s{sM}")
    e(f"v_mov_b32 v{vA0+1}, s{sIdx}")
    e(f"s_lshl_b32 s{sT2}, s{sWave}, 3")
    e(f"v_mov_b32 v{vT2}, s{sT2}")
    e("s_mov_b32 exec_hi, 0")
    e(f"ds_write_b128 v{vT}, {vr(vAcc,4)}")
    e("s_mov_b64 exec, 1")
    e(f"ds_write_b64 v{vT2}, {vr(vA0,2)} offset:{NW*512}")
    e("s_mov_b64 exec, -1")
    e("s_waitcnt lgkmcnt(0)")
    e("s_barrier")
    stamp(6)
    e(f"s_cmp_lg_u32 s{sWave}, 0")
    e("s_cbranch_scc1 L_fin")
    e("s_waitcnt vmcnt(0)")
    R = vK
    ML = R
    OO = R + 2 * NW
    assert 4 * NW <= 8 * CH and 4 * NS <= 8 * CH
    e(f"v_mov_b32 v{vT}, 0")
    e(f"v_lshlrev_b32 v{vT2}, 3, v{vLane}")
    if NW == 1:
        e(f"ds_read_b64 {vr(ML,2)}, v{vT} offset:{NW*512}")
    for w in range(0, NW - 1, 2):
        e(f"ds_read_b128 {vr(ML+2*w,4)}, v{vT} offset:{NW*512 + w*8}")
    for w in range(NW):
        e(f"ds_read_b64 {vr(OO+2*w,2)}, v{vT2} offset:{w*512}")
    e("s_waitcnt lgkmcnt(0)")

    def combine(n, mreg, lreg, oreg, dst):
        M = dst + 2
        e(f"v_mov_b32 v{M}, v{mreg(0)}")
        for w in range(1, n):
            e(f"v_max_f32 v{M}, v{M}, v{mreg(w)}")
        for w in range(n):
            e(f"v_sub_f32 v{mreg(w)}, v{mreg(w)}, v{M}")
        for w in range(n):
            e(f"v_mul_f32 v{mreg(w)}, s{sC}, v{mreg(w)}")
        for w in range(n):
            e(f"v_exp_f32 v{mreg(w)}, v{mreg(w)}")
        e("s_nop 0")
        e(f"v_mul_f32 v{dst}, v{mreg(0)}, v{oreg(0)}")
        e(f"v_mul_f32 v{dst+1}, v{mreg(0)}, v{oreg(0)+1}")
        e(f"v_mul_f32 v{dst+3}, v{mreg(0)}, v{lreg(0)}")
        for w in range(1, n):
            e(f"v_fmac_f32 v{dst}, v{mreg(w)}, v{oreg(w)}")
            e(f"v_fmac_f32 v{dst+1}, v{mreg(w)}, v{oreg(w)+1}")
            e(f"v_fmac_f32 v{dst+3}, v{mreg(w)}, v{lreg(w)}")

    combine(NW, lambda w: ML + 2 * w, lambda w: ML + 2 * w + 1, lambda w: OO + 2 * w, vA0)
    e(f"s_lshl_b32 s{sT2}, s{sHead}, {10+lgNS}")
    e(f"s_lshl_b32 s{sTmp}, s{sSplit}, 10")
    e(f"s_add_u32 s{sTmp}, s{sTmp}, s{sT2}")
    e(f"buffer_store_dwordx4 {vr(vA0,4)}, v{vOff}, s[{sW}:{sW+3}], s{sTmp} offen sc1")
    e(f"v_mov_b32 v{vT}, 0x10000")
    stamp(7)
    e("s_waitcnt vmcnt(0)")
    stamp(8)
    e("s_mov_b64 exec, 1")
    e(f"buffer_atomic_add v{vT}, v{vCo+1}, s[{sD}:{sD+3}], 0 offen sc0")
    e("s_waitcnt vmcnt(0)")
    e(f"v_readfirstlane_b32 s{sIdx}, v{vT}")
    e("s_mov_b64 exec, -1")
    stamp(9)
    e(f"s_lshr_b32 s{sIdx}, s{sIdx}, 16")
    e(f"s_cmp_lg_u32 s{sIdx}, {NS-1}")
    e("s_cbranch_scc1 L_fin")
    for s in range(NS):
        hi = (s * 1024) & ~0xFFF
        imm = (s * 1024) & 0xFFF
        if s % 4 == 0:
            e(f"s_add_u32 s{sTmp}, s{sT2}, {hi}")
        o = f" offset:{imm}" if imm else ""
        e(f"buffer_load_dwordx4 {vr(R+4*s,4)}, v{vOff}, s[{sW}:{sW+3}], s{sTmp} offen{o} sc1")
    e("s_waitcnt vmcnt(0)")
    stamp(10)
    combine(NS, lambda s: R + 4 * s + 2, lambda s: R + 4 * s + 3, lambda s: R + 4 * s, vA1)
    e(f"v_rcp_f32 v{vT}, v{vA1+3}")
    e(f"v_lshlrev_b32 v{vT2}, 2, v{vLane}")
    e(f"s_lshl_b32 s{sTmp}, s{sHead}, 8")
    e(f"v_mul_f32 v{vA1}, v{vA1}, v{vT}")
    e(f"v_mul_f32 v{vA1+1}, v{vA1+1}, v{vT}")
    e(f"v_cvt_pk_bf16_f32 v{vT}, v{vA1}, v{vA1+1}")
    e(f"buffer_store_dword v{vT}, v{vT2}, s[{sO}:{sO+3}], s{sTmp} offen")
    if p.diag:
        e("s_waitcnt vmcnt(0)")
        stamp(11)
    e.label("L_fin")
    if p.diag:
        e("s_waitcnt lgkmcnt(0) vmcnt(0)")
        e("s_mov_b64 exec, 1")
        e(f"s_mul_i32 s{sTmp}, s2, {NW}")
        e(f"s_add_u32 s{sTmp}, s{sTmp}, s{sWave}")
        e(f"s_lshl_b32 s{sTmp}, s{sTmp}, 6")
        e(f"s_add_u32 s{sTmp}, s{sTmp}, 0x100000")
        e(f"s_mov_b32 s{sW+2}, 0x1000000")
        e(f"v_mov_b32 v{vT}, 0")
        e(f"s_mov_b32 s{60+2*3}, s{sN}")
        for i in range(12):
            e(f"v_mov_b32 v{vK+i}, s{60+2*i}")
        e(f"s_getreg_b32 s58, hwreg(HW_REG_XCC_ID)")
        e(f"s_getreg_b32 s59, hwreg(HW_REG_HW_ID)")
        e(f"v_mov_b32 v{vK+12}, s58")
        e(f"v_mov_b32 v{vK+13}, s59")
        e(f"v_mov_b32 v{vK+14}, s2")
        e(f"v_mov_b32 v{vK+15}, s{sWave}")
        for i in range(4):
            e(f"buffer_store_dwordx4 {vr(vK+4*i,4)}, v{vT}, s[{sW}:{sW+3}], s{sTmp} offen offset:{16*i}")
    e.label("L_end")

    lds = max(NW * 512 + NW * 8, p.lds)
    nv = max(nvgpr, p.minvgpr)
    acc = (nv + 3) // 4 * 4
    out = HEADER
    out += f"; @launch grid=({NWG},1,1) block=({(NW+1)*64},1,1) lds={lds}\n"
    out += f""".amdgcn_target "amdgcn-amd-amdhsa--gfx950"
.text
.globl {NAME}_kernel
.p2align 8
.type {NAME}_kernel,@function
{NAME}_kernel:
"""
    out += e.text()
    out += f"""s_endpgm
.section .rodata,"a"
.p2align 6
.amdhsa_kernel {NAME}_kernel
  .amdhsa_next_free_vgpr {nv}
  .amdhsa_next_free_sgpr {88 if p.diag else 56}
  .amdhsa_accum_offset {acc}
  .amdhsa_group_segment_fixed_size 0
  .amdhsa_kernarg_size 48
  .amdhsa_user_sgpr_count 2
  .amdhsa_user_sgpr_kernarg_segment_ptr 1
  .amdhsa_system_sgpr_workgroup_id_x 1
.end_amdhsa_kernel
"""
    return out

if __name__ == "__main__":
    ap = argparse.ArgumentParser()
    ap.add_argument("--nw", type=int, default=4)
    ap.add_argument("--ns", type=int, default=4)
    ap.add_argument("--ch", type=int, default=8)
    ap.add_argument("--j", type=int, default=24)
    ap.add_argument("--spat", type=int, default=0)
    ap.add_argument("--flags", default="nt")
    ap.add_argument("--lds", type=int, default=90000)
    ap.add_argument("--minvgpr", type=int, default=0)
    ap.add_argument("--satom", type=int, default=0)
    ap.add_argument("--depth", type=int, default=0)
    ap.add_argument("--rot", type=int, default=0)
    ap.add_argument("--rs", type=int, default=0)
    ap.add_argument("--la2", type=int, default=0)
    ap.add_argument("--diag", type=int, default=0)
    ap.add_argument("-o", default="cdna_kernels/" + NAME + ".s")
    p = ap.parse_args()
    p.flags = (" " + p.flags.replace(",", " ")) if p.flags else ""
    open(p.o, "w").write(gen(p))
```

```python
import sys, re, argparse, struct, math
from gen2 import HEADER, E, vr, NAME

def gen(p):
    NS = 4
    R = B = 32
    flags = p.flags
    NWG = 256
    NB = 32
    bstep = B * 1024
    cval = (128 ** -0.5) * math.log2(math.e)
    CSC = struct.unpack("<I", struct.pack("<f", cval))[0]
    KL, VL = p.klev, p.vlev
    NM = max(len(KL), len(VL))
    assert len(KL) in (1, NM) and len(VL) in (1, NM)
    MID = p.mid
    TAU16 = int(round(p.texp * 100 * 16 / 64))
    OFF16 = int(round(p.toff * 100 * 16))
    SH = p.shift
    WIN = 256
    LDS_SC = 0

    vLane, vOff, vLds = 0, 2, 3
    vQ, vMask, vAcc, vA0, vA1, vS = 4, 8, 12, 16, 20, 24
    vL, vT, vT2, vAl = 28, 29, 30, 31
    vU = 32
    vMx, vInv = 36, 37
    vW, vWn, vP = 38, 40, 42
    vLse, vOut = 44, 45
    vR = 48
    vK = 60
    nvgpr = vK + 4 * R

    sK, sV, sQ, sO, sD, sW, sX = 8, 12, 16, 20, 24, 28, 32
    sCur, sNxt, sN, sM, sC, sHead, sSplit, sSched, sTmp, sIdx, sT2, sStart, sL, sMode, sLook, sTagMid = range(36, 52)
    sM1, sM2 = 52, 54
    sR = 56
    sT0, sNow = 84, 86
    e = E()
    def stamp(i):
        if p.diag:
            e(f"s_memrealtime s[{60+2*i}:{61+2*i}]")
    if p.diag:
        for i in range(60, 84):
            e(f"s_mov_b32 s{i}, 0")
    stamp(0)
    e(f"s_load_dwordx2 s[{sK}:{sK+1}], s[0:1], 8")
    e(f"s_load_dwordx2 s[{sQ}:{sQ+1}], s[0:1], 0")
    e(f"s_load_dwordx2 s[{sV}:{sV+1}], s[0:1], 16")
    e(f"s_load_dwordx2 s[{sO}:{sO+1}], s[0:1], 24")
    e(f"s_load_dwordx2 s[{sD}:{sD+1}], s[0:1], 32")
    e(f"s_load_dwordx2 s[{sW}:{sW+1}], s[0:1], 40")
    if NM > 1:
        e(f"s_memrealtime s[{sT0}:{sT0+1}]")
    e(f"s_cmp_ge_u32 s2, {NWG}")
    e("s_cbranch_scc1 L_end")
    e(f"v_lshlrev_b32 v{vOff}, 4, v{vLane}")
    e(f"s_lshr_b32 s{sHead}, s2, 2")
    e(f"s_lshl_b32 s{sStart}, s2, 20")
    e(f"s_mov_b32 s{sK+2}, 0x10000000")
    e(f"s_mov_b32 s{sK+3}, 0x00020000")
    e(f"s_mov_b32 s{sQ+2}, 16384")
    e(f"s_mov_b32 s{sQ+3}, 0x00020000")
    e(f"v_and_b32 v{vT2}, 0xf0, v{vOff}")
    e(f"s_lshl_b32 s{sT2}, s{sHead}, 8")
    e("s_waitcnt lgkmcnt(0)")
    if p.diag == 1:
        stamp(1)

    def issue(srd, sbase, slot):
        o = slot * 1024
        imm = o & 0xC00
        hi = o - imm
        if hi == 0:
            so = f"s{sbase}"
        else:
            if issue.cur != (sbase, hi):
                e(f"s_add_u32 s{sTmp}, s{sbase}, {hi}")
                issue.cur = (sbase, hi)
            so = f"s{sTmp}"
        oo = f" offset:{imm}" if imm else ""
        d = vK + 4 * slot
        e(f"buffer_load_dwordx4 {vr(d,4)}, v{vOff}, s[{srd}:{srd+3}], {so} offen{oo}{flags}")
    issue.cur = None

    def startmark():
        e(f"s_mov_b32 s{sD+2}, 256")
        e(f"s_mov_b32 s{sD+3}, 0x00020000")
        e(f"s_mov_b32 s{sW+2}, 0x100000")
        e(f"s_mov_b32 s{sW+3}, 0x00020000")
        e(f"v_mov_b32 v{vA0}, 0")
        e(f"v_mov_b32 v{vA0+1}, 0")
        e(f"v_mov_b32 v{vA0+2}, 0")
        e(f"v_mov_b32 v{vA0+3}, 0")
        e("s_mov_b64 exec, 1")
        if p.exp in (1, 4, 5):
            e(f"buffer_store_byte v{vA0}, v{vA0+1}, s[{sD}:{sD+3}], s2 offen sc1")
        else:
            e(f"s_lshl_b32 s{sTmp}, s2, 10")
            e(f"buffer_store_dwordx4 {vr(vA0,4)}, v{vA0+1}, s[{sW}:{sW+3}], s{sTmp} offen sc1")
        e("s_mov_b64 exec, -1")
    if p.exp in (1, 2, 4):
        startmark()
    e(f"buffer_load_dwordx4 {vr(vQ,4)}, v{vT2}, s[{sQ}:{sQ+3}], s{sT2} offen")
    for t in range(R):
        issue(sK, sStart, t)
    issue.cur = None
    if p.exp == 5:
        startmark()

    e(f"s_mov_b32 s{sD+2}, 256")
    e(f"s_mov_b32 s{sD+3}, 0x00020000")
    e(f"s_mov_b32 s{sW+2}, 0x100000")
    e(f"s_mov_b32 s{sW+3}, 0x00020000")
    e(f"s_mov_b64 s[{sX}:{sX+1}], s[{sK}:{sK+1}]")
    e(f"s_mov_b32 s{sX+2}, 0x10000000")
    e(f"s_mov_b32 s{sX+3}, 0x00020000")
    e(f"s_mov_b32 s{sO+2}, 16384")
    e(f"s_mov_b32 s{sO+3}, 0x00020000")
    e(f"s_mov_b32 s{sC}, 0x{CSC:08x}")
    e(f"s_mov_b32 s{sM1}, 0xaaaaaaaa")
    e(f"s_mov_b32 s{sM1+1}, 0xaaaaaaaa")
    e(f"s_mov_b32 s{sM2}, 0xcccccccc")
    e(f"s_mov_b32 s{sM2+1}, 0xcccccccc")
    e(f"s_mov_b32 s{sN}, 0")
    e(f"s_mov_b32 s{sNxt}, s{sStart}")
    e(f"s_mov_b32 s{sMode}, {MID}")
    if NM > 1:
        e(f"s_lshl_b32 s{sSched}, s{sT0}, 4")
        e(f"s_add_u32 s{sSched}, s{sSched}, {(OFF16 - (1 << SH)) & 0xffffffff}")
    e(f"v_lshlrev_b32 v{vLds}, 3, v{vLane}")
    e(f"v_and_b32 v{vT}, 15, v{vLane}")
    e(f"v_and_b32 v{vT2}, 1, v{vLane}")
    e(f"v_lshlrev_b32 v{vT2}, 4, v{vT2}")
    e(f"v_mov_b32 v{vAl}, 0xffff")
    e(f"v_lshlrev_b32 v{vAl}, v{vT2}, v{vAl}")
    e(f"v_lshrrev_b32 v{vT}, 1, v{vT}")
    for r in range(4):
        e(f"v_cmp_eq_u32 vcc, {r}, v{vT}")
        e("s_nop 1")
        e(f"v_cndmask_b32 v{vMask+r}, 0, v{vAl}, vcc")
    for r in range(4):
        e(f"v_mov_b32 v{vAcc+r}, 0")
    e(f"v_mov_b32 v{vL}, 0")
    e(f"v_mov_b32 v{vMx}, 0xff7fffff")
    stamp(2)

    def dispatch(prefix, n):
        if n > 1:
            order = sorted((m for m in range(n) if m != MID), key=lambda m: abs(m - MID))
            e(f"s_cmp_eq_u32 s{sMode}, {MID}")
            e(f"s_cbranch_scc1 {prefix}{MID}")
            for m in order[:-1]:
                e(f"s_cmp_eq_u32 s{sMode}, {m}")
                e(f"s_cbranch_scc1 {prefix}{m}")
            e(f"s_branch {prefix}{order[-1]}")
            e.label(f"{prefix}{MID}")

    def newmode():
        e(f"s_lshl_b32 s{sMode}, s{sNow}, 4")
        e(f"s_sub_u32 s{sMode}, s{sMode}, s{sSched}")
        e(f"s_ashr_i32 s{sMode}, s{sMode}, {SH}")
        e(f"s_max_i32 s{sMode}, s{sMode}, 0")
        e(f"s_min_i32 s{sMode}, s{sMode}, {NM-1}")
        e(f"s_add_u32 s{sSched}, s{sSched}, {TAU16}")

    e.label("L_ktop")
    e(f"s_memrealtime s[{sNow}:{sNow+1}]")
    e(f"s_add_u32 s{sNxt}, s{sNxt}, {bstep}")
    e(f"s_cmp_lg_u32 s{sN}, {NB-1}")
    e("s_cbranch_scc1 L_kgo")
    e(f"s_mov_b64 s[{sX}:{sX+1}], s[{sV}:{sV+1}]")
    e(f"s_mov_b32 s{sNxt}, s{sStart}")
    e.label("L_kgo")
    dispatch("L_kb", len(KL))

    def kbody(Wd):
        for h in range(2):
            for g in range(4):
                for b in range(4):
                    t = 16 * h + 4 * g + b
                    k = vK + 4 * t
                    e(f"s_waitcnt vmcnt({Wd})")
                    e(f"v_dot2_f32_bf16 v{vS+b}, v{k}, v{vQ}, 0")
                    for r in range(1, 4):
                        e(f"v_dot2_f32_bf16 v{vS+b}, v{k+r}, v{vQ+r}, v{vS+b}")
                    issue(sX, sNxt, t)
                e("s_nop 1")
                u = vU + g
                e(f"v_add_f32_dpp v{vS+0}, v{vS+0}, v{vS+0} row_mirror row_mask:0xf bank_mask:0x3")
                e(f"v_add_f32_dpp v{vS+1}, v{vS+1}, v{vS+1} row_mirror row_mask:0xf bank_mask:0x3")
                e(f"v_add_f32_dpp v{vS+0}, v{vS+2}, v{vS+2} row_mirror row_mask:0xf bank_mask:0xc")
                e(f"v_add_f32_dpp v{vS+1}, v{vS+3}, v{vS+3} row_mirror row_mask:0xf bank_mask:0xc")
                e("s_nop 0")
                e(f"v_add_f32_dpp v{u}, v{vS+0}, v{vS+0} row_half_mirror row_mask:0xf bank_mask:0x5")
                e(f"v_add_f32_dpp v{u}, v{vS+1}, v{vS+1} row_half_mirror row_mask:0xf bank_mask:0xa")
            e(f"v_cndmask_b32 v{vS+0}, v{vU+1}, v{vU+0}, s[{sM1}:{sM1+1}]")
            e(f"v_cndmask_b32 v{vS+1}, v{vU+3}, v{vU+2}, s[{sM1}:{sM1+1}]")
            e(f"v_cndmask_b32 v{vS+2}, v{vU+0}, v{vU+1}, s[{sM1}:{sM1+1}]")
            e(f"v_cndmask_b32 v{vS+3}, v{vU+2}, v{vU+3}, s[{sM1}:{sM1+1}]")
            e("s_nop 0")
            e(f"v_add_f32_dpp v{vS+2}, v{vS+0}, v{vS+2} quad_perm:[1,0,3,2] row_mask:0xf bank_mask:0xf")
            e(f"v_add_f32_dpp v{vS+3}, v{vS+1}, v{vS+3} quad_perm:[1,0,3,2] row_mask:0xf bank_mask:0xf")
            e(f"v_cndmask_b32 v{vS+0}, v{vS+3}, v{vS+2}, s[{sM2}:{sM2+1}]")
            e(f"v_cndmask_b32 v{vS+1}, v{vS+2}, v{vS+3}, s[{sM2}:{sM2+1}]")
            e("s_nop 1")
            e(f"v_add_f32_dpp v{vW+h}, v{vS+0}, v{vS+1} quad_perm:[2,3,0,1] row_mask:0xf bank_mask:0xf")
        issue.cur = None
    kmid = MID if len(KL) > 1 else 0
    kbody(KL[kmid] - 1)
    e.label("L_kdone")
    e("s_waitcnt lgkmcnt(0)")
    e(f"v_max3_f32 v{vMx}, v{vMx}, v{vW}, v{vW+1}")
    e(f"ds_write_b64 v{vLds}, {vr(vW,2)}")
    e(f"v_add_u32 v{vLds}, 512, v{vLds}")
    if NM > 1:
        newmode()
    e(f"s_add_u32 s{sN}, s{sN}, 1")
    if p.diag == 2:
        for (n, i) in ((1, 1), (2, 4)):
            e(f"s_cmp_lg_u32 s{sN}, {n}")
            e(f"s_cbranch_scc1 L_ds{n}")
            stamp(i)
            e.label(f"L_ds{n}")
    e(f"s_cmp_lg_u32 s{sN}, {NB}")
    e("s_cbranch_scc1 L_ktop")
    stamp(3)
    if p.exp in (3, 4):
        e(f"s_lshl_b32 s{sTmp}, s{sHead}, 2")
        e(f"v_mov_b32 v{vOut}, 0")
        e(f"buffer_load_dword v{vLse}, v{vOut}, s[{sD}:{sD+3}], s{sTmp} offen sc1")
    e(f"v_subrev_u32 v{vLds}, {NB*512}, v{vLds}")
    e(f"v_max_f32_dpp v{vMx}, v{vMx}, v{vMx} quad_perm:[1,0,3,2] row_mask:0xf bank_mask:0xf")
    e(f"ds_read_b64 {vr(vWn,2)}, v{vLds}")
    e(f"s_lshr_b64 s[{sNow}:{sNow+1}], s[{sNow}:{sNow+1}], 8")
    e(f"v_max_f32_dpp v{vMx}, v{vMx}, v{vMx} quad_perm:[2,3,0,1] row_mask:0xf bank_mask:0xf")
    e(f"s_mov_b32 s{sTagMid}, s{sNow}")
    e("s_nop 0")
    e(f"v_max_f32_dpp v{vMx}, v{vMx}, v{vMx} row_half_mirror row_mask:0xf bank_mask:0xf")
    e("s_nop 1")
    e(f"v_max_f32_dpp v{vMx}, v{vMx}, v{vMx} row_mirror row_mask:0xf bank_mask:0xf")
    e("s_nop 1")
    e(f"v_max_f32_dpp v{vMx}, v{vMx}, v{vMx} row_bcast:15 row_mask:0xa bank_mask:0xf")
    e("s_nop 1")
    e(f"v_max_f32_dpp v{vMx}, v{vMx}, v{vMx} row_bcast:31 row_mask:0xc bank_mask:0xf")
    e("s_nop 0")
    e(f"v_readlane_b32 s{sM}, v{vMx}, 63")
    e("s_nop 1")
    e(f"v_mov_b32 v{vMx}, s{sM}")
    e(f"v_mul_f32 v{vMx}, s{sC}, v{vMx}")
    e("s_waitcnt lgkmcnt(0)")
    e.label("L_vtop")
    e(f"s_add_u32 s{sNxt}, s{sNxt}, {bstep}")
    for h in range(2):
        e(f"v_fma_f32 v{vW+h}, v{vWn+h}, s{sC}, -v{vMx}")
    e(f"v_add_u32 v{vLds}, 512, v{vLds}")
    for h in range(2):
        e(f"v_exp_f32 v{vW+h}, v{vW+h}")
    e(f"s_cmp_eq_u32 s{sN}, {2*NB-1}")
    for h in range(2):
        e(f"v_cvt_pk_bf16_f32 v{vP+h}, v{vW+h}, v{vW+h}")
    for h in range(2):
        e(f"v_and_b32 v{vW+h}, 0xffff0000, v{vP+h}")
    for h in range(2):
        e(f"v_add_f32 v{vL}, v{vL}, v{vW+h}")
    e("s_cbranch_scc1 L_vlast")
    e(f"ds_read_b64 {vr(vWn,2)}, v{vLds}")
    e(f"s_memrealtime s[{sNow}:{sNow+1}]")
    dispatch("L_vb", len(VL))

    def vbody(Wd, last=False):
        for t in range(B):
            h, g, b = t // 16, (t % 16) // 4, t % 4
            A = vA0 if t % 2 == 0 else vA1
            for r in range(4):
                e(f"v_and_b32_dpp v{A+r}, v{vP+h}, v{vMask+r} row_newbcast:{4*b+g} row_mask:0xf bank_mask:0xf")
            e(f"s_waitcnt vmcnt({B-1-t+3 if last else Wd})")
            e("s_nop 0")
            k = vK + 4 * t
            e(f"v_mfma_f32_16x16x32_bf16 {vr(vAcc,4)}, {vr(A,4)}, {vr(k,4)}, {vr(vAcc,4)}")
            if not last:
                issue(sX, sNxt, t)
        issue.cur = None
    vmid = MID if len(VL) > 1 else 0
    vbody(VL[vmid] - 1)
    e.label("L_vdone")
    e("s_waitcnt lgkmcnt(0)")
    if NM > 1:
        newmode()
    e(f"s_add_u32 s{sN}, s{sN}, 1")
    if p.diag == 2:
        for (n, i) in ((33, 6), (34, 7), (63, 8)):
            e(f"s_cmp_lg_u32 s{sN}, {n}")
            e(f"s_cbranch_scc1 L_ds{n}")
            stamp(i)
            e.label(f"L_ds{n}")
    e("s_branch L_vtop")

    if len(KL) > 1:
        for m in range(NM):
            if m != MID:
                e.label(f"L_kb{m}")
                kbody(KL[m] - 1)
                e("s_branch L_kdone")
    if len(VL) > 1:
        for m in range(NM):
            if m != MID:
                e.label(f"L_vb{m}")
                vbody(VL[m] - 1)
                e("s_branch L_vdone")

    def look():
        for i in range(3):
            e(f"buffer_load_dwordx4 {vr(vR+4*i,4)}, v{vOff}, s[{sW}:{sW+3}], s{sR+i} offen sc1")
    def check():
        for i in range(3):
            e(f"v_subrev_u32 v{vS+i}, s{sTagMid}, v{vR+4*i+2}")
        e(f"v_max3_u32 v{vS}, v{vS}, v{vS+1}, v{vS+2}")
        e(f"v_cmp_lt_u32 vcc, {WIN}, v{vS}")
        e("s_nop 4")
    e.label("L_vlast")
    e(f"s_and_b32 s{sSplit}, s2, 3")
    e(f"s_lshl_b32 s{sT2}, s{sHead}, 12")
    for i in range(3):
        e(f"s_add_u32 s{sTmp}, s{sSplit}, {i+1}")
        e(f"s_and_b32 s{sTmp}, s{sTmp}, 3")
        e(f"s_lshl_b32 s{sTmp}, s{sTmp}, 10")
        e(f"s_add_u32 s{sR+i}, s{sT2}, s{sTmp}")
    look()
    for op in ["quad_perm:[1,0,3,2] row_mask:0xf", "quad_perm:[2,3,0,1] row_mask:0xf", "row_half_mirror row_mask:0xf",
               "row_mirror row_mask:0xf", "row_bcast:15 row_mask:0xa", "row_bcast:31 row_mask:0xc"]:
        e(f"v_add_f32_dpp v{vL}, v{vL}, v{vL} {op} bank_mask:0xf")
        e("s_nop 1")
    e(f"v_readlane_b32 s{sL}, v{vL}, 63")
    e(f"s_lshr_b64 s[{sNow}:{sNow+1}], s[{sNow}:{sNow+1}], 8")
    e(f"s_lshl_b32 s{sCur}, s2, 10")
    e(f"v_log_f32 v{vLse}, s{sL}")
    e(f"v_rcp_f32 v{vInv}, s{sL}")
    e(f"v_and_b32 v{vOut}, 0xf0, v{vOff}")
    e(f"v_bfe_u32 v{vT}, v{vLane}, 4, 1")
    e(f"v_lshl_add_u32 v{vOut}, v{vT}, 3, v{vOut}")
    e(f"v_lshrrev_b32 v{vT}, 5, v{vLane}")
    e(f"v_lshl_add_u32 v{vOut}, v{vT}, 2, v{vOut}")
    e(f"v_add_f32 v{vLse}, v{vLse}, v{vMx}")
    e(f"s_mov_b32 s{sLook}, 0")
    vbody(0, last=True)
    stamp(5)
    e("s_waitcnt vmcnt(0)")
    check()
    e(f"v_permlane32_swap_b32 v{vAcc}, v{vAcc+2}")
    e(f"v_permlane32_swap_b32 v{vAcc+1}, v{vAcc+3}")
    e(f"v_mul_f32 v{vAcc}, v{vAcc}, v{vInv}")
    e(f"v_mul_f32 v{vAcc+1}, v{vAcc+1}, v{vInv}")
    e("s_cbranch_vccz L_final")
    e(f"v_mov_b32 v{vAcc+2}, s{sNow}")
    e(f"v_mov_b32 v{vAcc+3}, v{vLse}")
    e(f"buffer_store_dwordx4 {vr(vAcc,4)}, v{vOff}, s[{sW}:{sW+3}], s{sCur} offen sc1")
    look()
    e(f"s_mov_b32 s{sLook}, 1")
    if p.diag == 1:
        stamp(7)
    e("s_waitcnt vmcnt(0)")
    if p.diag == 1:
        stamp(8)
    check()
    e("s_cbranch_vccz L_final")
    look()
    e(f"s_lshl_b32 s{sTmp}, s{sHead}, 2")
    e(f"v_mov_b32 v{vT}, 1")
    e(f"v_mov_b32 v{vT2}, s{sTmp}")
    e("s_mov_b64 exec, 1")
    e(f"buffer_atomic_add v{vT}, v{vT2}, s[{sD}:{sD+3}], 0 offen sc0")
    e("s_mov_b64 exec, -1")
    e(f"s_mov_b32 s{sLook}, 2")
    e("s_waitcnt vmcnt(1)")
    check()
    e("s_cbranch_vccz L_final")
    e("s_waitcnt vmcnt(0)")
    e(f"v_readfirstlane_b32 s{sIdx}, v{vT}")
    stamp(9)
    e(f"s_cmp_lg_u32 s{sIdx}, {NS-1}")
    e("s_cbranch_scc1 L_fin")
    look()
    e(f"s_mov_b32 s{sLook}, 3")
    e("s_waitcnt vmcnt(0)")
    e.label("L_final")
    stamp(10)
    F = vA0
    e(f"v_max3_f32 v{vT2}, v{vLse}, v{vR+3}, v{vR+7}")
    e(f"v_max_f32 v{vT2}, v{vT2}, v{vR+11}")
    e(f"v_sub_f32 v{F}, v{vLse}, v{vT2}")
    for i in range(3):
        e(f"v_sub_f32 v{F+1+i}, v{vR+4*i+3}, v{vT2}")
    for i in range(4):
        e(f"v_exp_f32 v{F+i}, v{F+i}")
    e(f"s_lshl_b32 s{sTmp}, s{sHead}, 8")
    e(f"v_add_f32 v{vT2}, v{F}, v{F+1}")
    e(f"v_add_f32 v{vAl}, v{F+2}, v{F+3}")
    e(f"v_add_f32 v{vT2}, v{vT2}, v{vAl}")
    e(f"v_rcp_f32 v{vT2}, v{vT2}")
    for r in range(2):
        e(f"v_mul_f32 v{vA1+r}, v{vAcc+r}, v{F}")
    for i in range(3):
        for r in range(2):
            e(f"v_fmac_f32 v{vA1+r}, v{vR+4*i+r}, v{F+1+i}")
    for r in range(2):
        e(f"v_mul_f32 v{vA1+r}, v{vA1+r}, v{vT2}")
    e(f"v_cvt_pk_bf16_f32 v{vA1}, v{vA1}, v{vA1+1}")
    e(f"buffer_store_dword v{vA1}, v{vOut}, s[{sO}:{sO+3}], s{sTmp} offen")
    if p.diag:
        e("s_waitcnt vmcnt(0)")
        stamp(11)
    e.label("L_fin")
    if p.diag:
        e("s_waitcnt lgkmcnt(0) vmcnt(0)")
        e("s_mov_b64 exec, 1")
        e(f"s_lshl_b32 s{sTmp}, s2, 6")
        e(f"s_add_u32 s{sTmp}, s{sTmp}, 0x100000")
        e(f"s_mov_b32 s{sW+2}, 0x1000000")
        e(f"v_mov_b32 v{vT}, 0")
        for i in range(12):
            e(f"v_mov_b32 v{vK+i}, s{60+2*i}")
        e(f"s_getreg_b32 s58, hwreg(HW_REG_XCC_ID)")
        e(f"v_mov_b32 v{vK+12}, s58")
        e(f"v_mov_b32 v{vK+13}, s{sLook}")
        e(f"v_mov_b32 v{vK+14}, s2")
        e(f"v_mov_b32 v{vK+15}, s{sMode}")
        for i in range(4):
            e(f"buffer_store_dwordx4 {vr(vK+4*i,4)}, v{vT}, s[{sW}:{sW+3}], s{sTmp} offen offset:{16*i}")
    e.label("L_end")

    lds = max(16384 + 1024, p.lds)
    nv = nvgpr
    acc = (nv + 3) // 4 * 4
    out = HEADER
    out += f"; @launch grid=({NWG},1,1) block=(64,1,1) lds={lds}\n"
    out += f""".amdgcn_target "amdgcn-amd-amdhsa--gfx950"
.text
.globl {NAME}_kernel
.p2align 8
.type {NAME}_kernel,@function
{NAME}_kernel:
"""
    out += e.text()
    out += f"""s_endpgm
.section .rodata,"a"
.p2align 6
.amdhsa_kernel {NAME}_kernel
  .amdhsa_next_free_vgpr {nv}
  .amdhsa_next_free_sgpr 96
  .amdhsa_accum_offset {acc}
  .amdhsa_group_segment_fixed_size 0
  .amdhsa_kernarg_size 48
  .amdhsa_user_sgpr_count 2
  .amdhsa_user_sgpr_kernarg_segment_ptr 1
  .amdhsa_system_sgpr_workgroup_id_x 1
.end_amdhsa_kernel
"""
    return out

if __name__ == "__main__":
    il = lambda s: [int(x) for x in s.split(",")] if s else []
    ap = argparse.ArgumentParser()
    ap.add_argument("--klev", type=il, default=[20])
    ap.add_argument("--vlev", type=il, default=[20])
    ap.add_argument("--mid", type=int, default=0)
    ap.add_argument("--texp", type=float, default=70.0)
    ap.add_argument("--toff", type=float, default=1.0)
    ap.add_argument("--shift", type=int, default=9)
    ap.add_argument("--flags", default="nt")
    ap.add_argument("--lds", type=int, default=90000)
    ap.add_argument("--exp", type=int, default=0)
    ap.add_argument("--diag", type=int, default=0)
    ap.add_argument("-o", default="cdna_kernels/" + NAME + ".s")
    p = ap.parse_args()
    p.flags = (" " + p.flags.replace(",", " ")) if p.flags else ""
    open(p.o, "w").write(gen(p))
```

```python
import sys, re, argparse, struct, math
from gen2 import HEADER, E, vr, NAME

DOC = """
Decode attention, B*H = 64 heads, 16384 keys, d = 128, bf16.  HBM-bound: K and V are each read exactly once.
Generated by gen/gen8.py (own script).

Work split : 256 workgroups of one wave (one per CU), 4 per head, 4096 keys each.  Workgroup id bit 0 selects
             32 KB blocks (address bit 15), bit 1 the 2 MiB half of the head (address bit 21).
Pass 1 (K) : 32 bodies of 32 x 1 KB loads (lane row c = key, lane&15 = 16-B chunk).  v_dot2 partial dot products,
             DPP transposing reduction -> one score per lane, scores kept in LDS, exact max of this split.
Pass 2 (V) : p = exp2(s*c - max*c) in bf16; O += P.V through v_mfma_16x16x32 with A = p placed on a diagonal
             (A[i][c,e] = p[c] * (i == e)), so V is used directly in its row-major load layout.
Loads      : a ring of 32 register slots, each re-issued right after it is consumed.  The s_waitcnt value bounds the
             bytes in flight (about 20 KB per CU saturates HBM while keeping the XCDs fair); a workgroup that is
             behind the nominal rate uses a copy of the body with a deeper window, one that is ahead a shallower one.
Combine    : each workgroup publishes {O/l (2 values), tag, log-sum-exp} per lane in d_ws.  The tag is a clock value
             that tells records of this launch from older contents.  Whoever sees the three other records writes the
             output; if nobody does, the last arrival on the d_debug counter of the head does.
"""

def gen(p):
    NS = 4
    R = B = 32
    flags = p.flags
    NWG = 256
    NB = 32
    bstep = B * 1024 << p.il
    GL = p.gl
    F = 1 << p.il
    cval = (128 ** -0.5) * math.log2(math.e)
    CSC = struct.unpack("<I", struct.pack("<f", cval))[0]
    KL, VL = p.klev, p.vlev
    NM = max(len(KL), len(VL))
    assert len(KL) in (1, NM) and len(VL) in (1, NM)
    MID = p.mid
    TAU16 = int(round(p.texp * 100 * 16 / 64))
    OFF16 = int(round(p.toff * 100 * 16))
    SH = p.shift
    WIN = 256
    LDS_SC = 0

    vLane, vOff, vLds = 0, 2, 3
    vQ, vMask, vAcc, vA0, vA1, vS = 4, 8, 12, 16, 20, 24
    vL, vT, vT2, vAl = 28, 29, 30, 31
    vU = 32
    vMx, vInv = 36, 37
    vW, vWn, vP = 38, 40, 42
    vLse, vOut = 44, 45
    vR = 48
    vK = 84
    nvgpr = vK + 4 * R
    vKoff = nvgpr
    if p.rows != [8, 9]:
        nvgpr += 1

    sK, sV, sQ, sO, sD, sW, sX = 8, 12, 16, 20, 24, 28, 32
    sCur, sNxt, sN, sM, sC, sHead, sSplit, sSched, sTmp, sIdx, sT2, sStart, sL, sMode, sLook, sTagMid = range(36, 52)
    sM1, sM2 = 52, 54
    sR = 56
    sT0, sNow = 84, 86
    sPC = 88
    sPrev = 90
    vPf, vWl, vTag = 47, 1, 46
    e = E()
    for line in DOC.strip("\n").split("\n"):
        e.c(line)
    def stamp(i):
        if p.diag:
            e(f"s_memrealtime s[{60+2*i}:{61+2*i}]")
    if p.diag:
        for i in range(60, 84):
            e(f"s_mov_b32 s{i}, 0")
    stamp(0)
    if p.pro:
        e(f"s_getpc_b64 s[{sPC}:{sPC+1}]")
        e.label("L_pc0")
        e(f"v_lshlrev_b32 v{vT}, 7, v{vLane}")
        e(f"global_load_dword v{vPf}, v{vT}, s[{sPC}:{sPC+1}]")
        e(f"s_load_dwordx2 s[{sK}:{sK+1}], s[0:1], 8")
        e(f"s_load_dwordx2 s[{sQ}:{sQ+1}], s[0:1], 0")
        e(f"s_memrealtime s[{sT0}:{sT0+1}]")
        e(f"s_cmp_ge_u32 s2, {NWG}")
        e("s_cbranch_scc1 L_end")
        e(f"v_lshlrev_b32 v{vOff}, 4, v{vLane}")
        e(f"s_lshl_b32 s{sStart}, s2, 20")
        e(f"s_mov_b32 s{sK+2}, 0x10000000")
        e(f"s_mov_b32 s{sK+3}, 0x00020000")
    else:
        e(f"s_load_dwordx2 s[{sK}:{sK+1}], s[0:1], 8")
        e(f"s_load_dwordx2 s[{sQ}:{sQ+1}], s[0:1], 0")
        e(f"s_load_dwordx2 s[{sV}:{sV+1}], s[0:1], 16")
        e(f"s_load_dwordx2 s[{sO}:{sO+1}], s[0:1], 24")
        e(f"s_load_dwordx2 s[{sD}:{sD+1}], s[0:1], 32")
        e(f"s_load_dwordx2 s[{sW}:{sW+1}], s[0:1], 40")
        if NM > 1:
            e(f"s_memrealtime s[{sT0}:{sT0+1}]")
        e(f"s_cmp_ge_u32 s2, {NWG}")
        e("s_cbranch_scc1 L_end")
        e(f"v_lshlrev_b32 v{vOff}, 4, v{vLane}")
        if p.vid:
            e(f"s_lshl_b32 s{sTmp}, s2, {p.vid}")
            e(f"s_lshr_b32 s2, s2, {8-p.vid}")
            e(f"s_and_b32 s{sTmp}, s{sTmp}, 0xff")
            e(f"s_or_b32 s2, s2, s{sTmp}")
        e(f"s_lshr_b32 s{sHead}, s2, 2")
        if p.map:
            if len(p.map) == 12:
                assert sorted(p.map + p.rows) == list(range(8, 22))
                e(f"s_lshl_b32 s{sStart}, s{sHead}, 22")
                if p.rows != [8, 9]:
                    e(f"v_and_b32 v{vKoff}, 0xf0, v{vOff}")
                    for i in range(2):
                        e(f"v_bfe_u32 v{vT}, v{vLane}, {4+i}, 1")
                        e(f"v_lshl_add_u32 v{vKoff}, v{vT}, {p.rows[i]}, v{vKoff}")
            else:
                assert sorted(p.map) == list(range(10, 28))
                e(f"s_mov_b32 s{sStart}, 0")
            for i in range(len(p.map) - 10):
                e(f"s_bfe_u32 s{sTmp}, s2, {i | (1 << 16)}")
                e(f"s_lshl_b32 s{sTmp}, s{sTmp}, {p.map[10+i]}")
                e(f"s_or_b32 s{sStart}, s{sStart}, s{sTmp}")
            for (ab, hb) in zip(p.xr[0::2], p.xr[1::2]):
                e(f"s_bfe_u32 s{sTmp}, s2, {hb | (1 << 16)}")
                e(f"s_lshl_b32 s{sTmp}, s{sTmp}, {ab}")
                e(f"s_xor_b32 s{sStart}, s{sStart}, s{sTmp}")
        elif p.il:
            perm = p.perm
            tbl = sum(perm[i] << (4 * i) for i in range(4))
            e(f"s_and_b32 s{sTmp}, s2, 3")
            e(f"s_lshl_b32 s{sTmp}, s{sTmp}, 2")
            e(f"s_lshr_b32 s{sTmp}, {tbl}, s{sTmp}")
            e(f"s_and_b32 s{sTmp}, s{sTmp}, 3")
            e(f"s_andn2_b32 s{sT2}, s2, 3")
            e(f"s_or_b32 s{sT2}, s{sT2}, s{sTmp}")
            e(f"s_lshr_b32 s{sStart}, s{sT2}, {p.il}")
            e(f"s_lshl_b32 s{sStart}, s{sStart}, {20+p.il}")
            e(f"s_and_b32 s{sTmp}, s{sT2}, {(1<<p.il)-1}")
            e(f"s_mul_i32 s{sTmp}, s{sTmp}, {GL*1024}")
            e(f"s_add_u32 s{sStart}, s{sStart}, s{sTmp}")
        else:
            e(f"s_lshl_b32 s{sStart}, s2, 20")
        e(f"s_mov_b32 s{sK+2}, 0x10000000")
        e(f"s_mov_b32 s{sK+3}, 0x00020000")
        e(f"s_mov_b32 s{sQ+2}, 16384")
        e(f"s_mov_b32 s{sQ+3}, 0x00020000")
        e(f"v_and_b32 v{vT2}, 0xf0, v{vOff}")
    def code_prefetch(tag, start, end, nloads):
        e.c("pull this kernel's own code into L2 (one dword per 128 B)")
        e(f"s_getpc_b64 s[{sPC}:{sPC+1}]")
        e.label(f"L_pc{tag}")
        e(f"s_add_u32 s{sPC}, s{sPC}, {start}-L_pc{tag}")
        e(f"s_addc_u32 s{sPC+1}, s{sPC+1}, 0")
        for i in range(nloads):
            e(f"v_lshlrev_b32 v{vT}, 7, v{vLane}")
            if i:
                e(f"v_add_u32 v{vT}, {8192*i}, v{vT}")
            e(f"v_min_u32 v{vT}, {end}-{start}-4, v{vT}")
            e(f"global_load_dword v{vPf}, v{vT}, s[{sPC}:{sPC+1}]")

    if not p.pro:
        e(f"s_lshl_b32 s{sT2}, s{sHead}, 8")
    if p.pf & 8:
        code_prefetch("d", "L_pro", "L_end", p.pfn)
    e("s_waitcnt lgkmcnt(0)")
    if p.numa:
        e(f"s_lshl_b32 s{sTmp}, s2, 2")
        e(f"s_add_u32 s{sTmp}, s{sTmp}, 0x80000")
        e(f"s_load_dword s91, s[{sW}:{sW+1}], s{sTmp}")
        e("s_waitcnt lgkmcnt(0)")
        e(f"s_bfe_u32 s{sTmp}, s91, {1 | (1 << 16)}")
        e(f"s_lshl_b32 s{sTmp}, s{sTmp}, 13")
        e(f"s_xor_b32 s92, s{sStart}, s{sTmp}")
        e(f"s_and_b32 s{sTmp}, s91, 1")
        e(f"s_lshl_b32 s{sTmp}, s{sTmp}, 13")
        e(f"s_xor_b32 s{sStart}, s{sStart}, s{sTmp}")
    e.label("L_pro")
    if p.diag == 1:
        stamp(1)

    def issue(srd, sbase, slot):
        o = slot * 1024
        if p.il and GL < 32:
            o = (slot // GL) * GL * F * 1024 + (slot % GL) * 1024
        if p.map:
            o = sum(((slot >> i) & 1) << p.map[i] for i in range(5))
        if p.strips:
            S_, g_ = p.strips, p.sg
            o = ((slot // g_) % S_) * p.ss * 1024 + ((slot // (g_ * S_)) * g_ + slot % g_) * 1024
        imm = o & 0xF00
        hi = o - imm
        if hi == 0:
            so = f"s{sbase}"
        else:
            if issue.cur != (sbase, hi):
                e(f"s_add_u32 s{sTmp}, s{sbase}, {hi}")
                issue.cur = (sbase, hi)
            so = f"s{sTmp}"
        oo = f" offset:{imm}" if imm else ""
        d = vK + 4 * slot
        e(f"buffer_load_dwordx4 {vr(d,4)}, v{vOff if p.rows == [8, 9] else vKoff}, s[{srd}:{srd+3}], {so} offen{oo}{flags}")
    issue.cur = None

    if not p.pro:
        e(f"buffer_load_dwordx4 {vr(vQ,4)}, v{vT2}, s[{sQ}:{sQ+3}], s{sT2} offen")
    if p.pf & 4:
        code_prefetch("c", "L_ktop", "L_kdone", 1)
    for t in range(R):
        issue(sK, sStart, t)
        if p.pro and t == 3:
            e(f"s_lshr_b32 s{sHead}, s2, 2")
            e(f"s_mov_b32 s{sQ+2}, 16384")
            e(f"s_mov_b32 s{sQ+3}, 0x00020000")
            e(f"v_and_b32 v{vT2}, 0xf0, v{vOff}")
            e(f"s_lshl_b32 s{sT2}, s{sHead}, 8")
            e(f"buffer_load_dwordx4 {vr(vQ,4)}, v{vT2}, s[{sQ}:{sQ+3}], s{sT2} offen")
    issue.cur = None
    if p.pro:
        e(f"v_add_u32 v{vT}, 8192, v{vT}")
        e(f"v_min_u32 v{vT}, L_end-L_pc0-4, v{vT}")
        e(f"global_load_dword v{vPf}, v{vT}, s[{sPC}:{sPC+1}]")
        e(f"s_load_dwordx2 s[{sV}:{sV+1}], s[0:1], 16")
        e(f"s_load_dwordx2 s[{sO}:{sO+1}], s[0:1], 24")
        e(f"s_load_dwordx2 s[{sD}:{sD+1}], s[0:1], 32")
        e(f"s_load_dwordx2 s[{sW}:{sW+1}], s[0:1], 40")
    if p.pf & 1:
        code_prefetch("a", "L_kdone", "L_end", p.pfn)

    e(f"s_mov_b32 s{sD+2}, 256")
    e(f"s_mov_b32 s{sD+3}, 0x00020000")
    e(f"s_mov_b32 s{sW+2}, 0x100000")
    e(f"s_mov_b32 s{sW+3}, 0x00020000")
    e(f"s_mov_b64 s[{sX}:{sX+1}], s[{sK}:{sK+1}]")
    e(f"s_mov_b32 s{sX+2}, 0x10000000")
    e(f"s_mov_b32 s{sX+3}, 0x00020000")
    if p.touch:
        e(f"s_mov_b32 s{sV+2}, 0x10000000")
        e(f"s_mov_b32 s{sV+3}, 0x00020000")
        e(f"v_lshlrev_b32 v{vT}, {p.touchsh}, v{vLane}")
        e(f"v_and_b32 v{vT}, 0xfffff, v{vT}")
        if p.touch & 1:
            e(f"buffer_load_dword v{vOut}, v{vT}, s[{sV}:{sV+3}], s{sStart} offen nt")
        if p.touch & 2:
            e(f"buffer_load_dword v{vInv}, v{vT}, s[{sK}:{sK+3}], s{sStart} offen nt")
    e(f"s_mov_b32 s{sO+2}, 16384")
    e(f"s_mov_b32 s{sO+3}, 0x00020000")
    e(f"s_mov_b32 s{sC}, 0x{CSC:08x}")
    e(f"s_mov_b32 s{sM1}, 0xaaaaaaaa")
    e(f"s_mov_b32 s{sM1+1}, 0xaaaaaaaa")
    e(f"s_mov_b32 s{sM2}, 0xcccccccc")
    e(f"s_mov_b32 s{sM2+1}, 0xcccccccc")
    e(f"s_mov_b32 s{sN}, 0")
    e(f"s_mov_b32 s{sNxt}, s{sStart}")
    e(f"s_mov_b32 s{sMode}, {MID}")
    e(f"s_mov_b32 s{sPrev}, 0x100000")
    if NM > 1:
        e(f"s_lshl_b32 s{sSched}, s{sT0}, 4")
        e(f"s_add_u32 s{sSched}, s{sSched}, {(OFF16 - (1 << SH)) & 0xffffffff}")
    e(f"v_lshlrev_b32 v{vLds}, 3, v{vLane}")
    e(f"v_and_b32 v{vT}, 15, v{vLane}")
    e(f"v_and_b32 v{vT2}, 1, v{vLane}")
    e(f"v_lshlrev_b32 v{vT2}, 4, v{vT2}")
    e(f"v_mov_b32 v{vAl}, 0xffff")
    e(f"v_lshlrev_b32 v{vAl}, v{vT2}, v{vAl}")
    e(f"v_lshrrev_b32 v{vT}, 1, v{vT}")
    for r in range(4):
        e(f"v_cmp_eq_u32 vcc, {r}, v{vT}")
        e("s_nop 1")
        e(f"v_cndmask_b32 v{vMask+r}, 0, v{vAl}, vcc")
    for r in range(4):
        e(f"v_mov_b32 v{vAcc+r}, 0")
    e(f"v_mov_b32 v{vL}, 0")
    e(f"v_mov_b32 v{vMx}, 0xff7fffff")
    stamp(2)

    def dispatch(prefix, n):
        if n > 1:
            order = sorted((m for m in range(n) if m != MID), key=lambda m: abs(m - MID))
            e(f"s_cmp_eq_u32 s{sMode}, {MID}")
            e(f"s_cbranch_scc1 {prefix}{MID}")
            for m in order[:-1]:
                e(f"s_cmp_eq_u32 s{sMode}, {m}")
                e(f"s_cbranch_scc1 {prefix}{m}")
            e(f"s_branch {prefix}{order[-1]}")
            e.label(f"{prefix}{MID}")

    def newmode(kphase=False):
        e.c("window level for the next body from (clock - nominal time of this body); a jump > 1 us re-bases")
        e(f"s_lshl_b32 s{sMode}, s{sNow}, 4")
        e(f"s_sub_u32 s{sMode}, s{sMode}, s{sSched}")
        if p.cap:
            e(f"s_sub_u32 s{sTmp}, s{sMode}, s{sPrev}")
            e(f"s_cmp_gt_i32 s{sTmp}, {int(p.cap*1600)}")
            e(f"s_cselect_b32 s{sTmp}, s{sTmp}, 0")
            e(f"s_add_u32 s{sSched}, s{sSched}, s{sTmp}")
            e(f"s_sub_u32 s{sMode}, s{sMode}, s{sTmp}")
            e(f"s_mov_b32 s{sPrev}, s{sMode}")
            if kphase:
                e(f"s_cmp_eq_u32 s{sN}, 0")
                e(f"s_cselect_b32 s{sPrev}, 0x100000, s{sPrev}")
        e(f"s_ashr_i32 s{sMode}, s{sMode}, {SH}")
        e(f"s_max_i32 s{sMode}, s{sMode}, 0")
        e(f"s_min_i32 s{sMode}, s{sMode}, {NM-1}")
        e(f"s_add_u32 s{sSched}, s{sSched}, {TAU16}")

    e.c("---------------- pass 1: scores")
    e.label("L_ktop")
    e(f"s_memrealtime s[{sNow}:{sNow+1}]")
    def advance():
        if p.map:
            bm = p.map[5:10]
            if all(bm[i] == bm[0] + i for i in range(5)) and not p.xr:
                e(f"s_add_u32 s{sNxt}, s{sNxt}, {1 << bm[0]}")
            else:
                e(f"s_add_u32 s{sT2}, s{sN}, 1")
                e(f"s_mov_b32 s{sNxt}, s{sStart}")
                i = 0
                while i < 5:
                    j = i
                    while j + 1 < 5 and bm[j + 1] == bm[j] + 1:
                        j += 1
                    e(f"s_bfe_u32 s{sTmp}, s{sT2}, {i | ((j - i + 1) << 16)}")
                    e(f"s_lshl_b32 s{sTmp}, s{sTmp}, {bm[i]}")
                    e(f"s_xor_b32 s{sNxt}, s{sNxt}, s{sTmp}")
                    i = j + 1
        elif p.strips:
            nb = p.strips * p.ss // 32
            e(f"s_add_u32 s{sTmp}, s{sN}, 1")
            e(f"s_and_b32 s{sTmp}, s{sTmp}, {nb-1}")
            e(f"s_cselect_b32 s{sTmp}, 0, {(p.strips-1)*p.ss*1024}")
            e(f"s_add_u32 s{sNxt}, s{sNxt}, s{sTmp}")
            e(f"s_add_u32 s{sNxt}, s{sNxt}, {32//p.strips*1024}")
        elif p.il and GL > 32:
            nb = GL // 32
            e(f"s_add_u32 s{sTmp}, s{sN}, 1")
            e(f"s_and_b32 s{sTmp}, s{sTmp}, {nb-1}")
            e(f"s_cselect_b32 s{sTmp}, 0, {GL*1024*(F-1)}")
            e(f"s_add_u32 s{sNxt}, s{sNxt}, s{sTmp}")
            e(f"s_add_u32 s{sNxt}, s{sNxt}, {32*1024}")
        else:
            e(f"s_add_u32 s{sNxt}, s{sNxt}, {bstep}")
    advance()
    e(f"s_cmp_lg_u32 s{sN}, {NB-1}")
    e("s_cbranch_scc1 L_kgo")
    e(f"s_mov_b64 s[{sX}:{sX+1}], s[{sV}:{sV+1}]")
    if p.numa:
        e(f"s_mov_b32 s{sStart}, s92")
    e(f"s_mov_b32 s{sNxt}, s{sStart}")
    e.label("L_kgo")
    dispatch("L_kb", len(KL))

    def kbody(Wd):
        for h in range(2):
            for g in range(4):
                for b in range(4):
                    t = 16 * h + 4 * g + b
                    k = vK + 4 * t
                    e(f"s_waitcnt vmcnt({Wd})")
                    e(f"v_dot2_f32_bf16 v{vS+b}, v{k}, v{vQ}, 0")
                    for r in range(1, 4):
                        e(f"v_dot2_f32_bf16 v{vS+b}, v{k+r}, v{vQ+r}, v{vS+b}")
                    issue(sX, sNxt, t)
                e("s_nop 1")
                u = vU + g
                e(f"v_add_f32_dpp v{vS+0}, v{vS+0}, v{vS+0} row_mirror row_mask:0xf bank_mask:0x3")
                e(f"v_add_f32_dpp v{vS+1}, v{vS+1}, v{vS+1} row_mirror row_mask:0xf bank_mask:0x3")
                e(f"v_add_f32_dpp v{vS+0}, v{vS+2}, v{vS+2} row_mirror row_mask:0xf bank_mask:0xc")
                e(f"v_add_f32_dpp v{vS+1}, v{vS+3}, v{vS+3} row_mirror row_mask:0xf bank_mask:0xc")
                e("s_nop 0")
                e(f"v_add_f32_dpp v{u}, v{vS+0}, v{vS+0} row_half_mirror row_mask:0xf bank_mask:0x5")
                e(f"v_add_f32_dpp v{u}, v{vS+1}, v{vS+1} row_half_mirror row_mask:0xf bank_mask:0xa")
            e(f"v_cndmask_b32 v{vS+0}, v{vU+1}, v{vU+0}, s[{sM1}:{sM1+1}]")
            e(f"v_cndmask_b32 v{vS+1}, v{vU+3}, v{vU+2}, s[{sM1}:{sM1+1}]")
            e(f"v_cndmask_b32 v{vS+2}, v{vU+0}, v{vU+1}, s[{sM1}:{sM1+1}]")
            e(f"v_cndmask_b32 v{vS+3}, v{vU+2}, v{vU+3}, s[{sM1}:{sM1+1}]")
            e("s_nop 0")
            e(f"v_add_f32_dpp v{vS+2}, v{vS+0}, v{vS+2} quad_perm:[1,0,3,2] row_mask:0xf bank_mask:0xf")
            e(f"v_add_f32_dpp v{vS+3}, v{vS+1}, v{vS+3} quad_perm:[1,0,3,2] row_mask:0xf bank_mask:0xf")
            e(f"v_cndmask_b32 v{vS+0}, v{vS+3}, v{vS+2}, s[{sM2}:{sM2+1}]")
            e(f"v_cndmask_b32 v{vS+1}, v{vS+2}, v{vS+3}, s[{sM2}:{sM2+1}]")
            e("s_nop 1")
            e(f"v_add_f32_dpp v{vW+h}, v{vS+0}, v{vS+1} quad_perm:[2,3,0,1] row_mask:0xf bank_mask:0xf")
        issue.cur = None
    kmid = MID if len(KL) > 1 else 0
    kbody(KL[kmid] - 1)
    e.label("L_kdone")
    e("s_waitcnt lgkmcnt(0)")
    e(f"v_max3_f32 v{vMx}, v{vMx}, v{vW}, v{vW+1}")
    e(f"ds_write_b64 v{vLds}, {vr(vW,2)}")
    e(f"v_add_u32 v{vLds}, 512, v{vLds}")
    if NM > 1:
        newmode(True)
    e(f"s_add_u32 s{sN}, s{sN}, 1")
    if p.diag == 2:
        for (n, i) in ((1, 1), (2, 4)):
            e(f"s_cmp_lg_u32 s{sN}, {n}")
            e(f"s_cbranch_scc1 L_ds{n}")
            stamp(i)
            e.label(f"L_ds{n}")
    e(f"s_cmp_lg_u32 s{sN}, {NB}")
    e("s_cbranch_scc1 L_ktop")
    stamp(3)
    e.c("---------------- max over this split's scores")
    e(f"v_subrev_u32 v{vLds}, {NB*512}, v{vLds}")
    e(f"v_max_f32_dpp v{vMx}, v{vMx}, v{vMx} quad_perm:[1,0,3,2] row_mask:0xf bank_mask:0xf")
    e(f"ds_read_b64 {vr(vWn,2)}, v{vLds}")
    e(f"s_lshr_b64 s[{sNow}:{sNow+1}], s[{sNow}:{sNow+1}], 8")
    e(f"v_max_f32_dpp v{vMx}, v{vMx}, v{vMx} quad_perm:[2,3,0,1] row_mask:0xf bank_mask:0xf")
    e(f"s_mov_b32 s{sTagMid}, s{sNow}")
    e("s_nop 0")
    e(f"v_max_f32_dpp v{vMx}, v{vMx}, v{vMx} row_half_mirror row_mask:0xf bank_mask:0xf")
    e("s_nop 1")
    e(f"v_max_f32_dpp v{vMx}, v{vMx}, v{vMx} row_mirror row_mask:0xf bank_mask:0xf")
    e("s_nop 1")
    e(f"v_max_f32_dpp v{vMx}, v{vMx}, v{vMx} row_bcast:15 row_mask:0xa bank_mask:0xf")
    e("s_nop 1")
    e(f"v_max_f32_dpp v{vMx}, v{vMx}, v{vMx} row_bcast:31 row_mask:0xc bank_mask:0xf")
    e("s_nop 0")
    e(f"v_readlane_b32 s{sM}, v{vMx}, 63")
    e("s_nop 1")
    e(f"v_mov_b32 v{vMx}, s{sM}")
    e(f"v_mul_f32 v{vMx}, s{sC}, v{vMx}")
    e("s_waitcnt lgkmcnt(0)")
    e.c("---------------- pass 2: P.V")
    e.label("L_vtop")
    advance()
    for h in range(2):
        e(f"v_fma_f32 v{vW+h}, v{vWn+h}, s{sC}, -v{vMx}")
    e(f"v_add_u32 v{vLds}, 512, v{vLds}")
    for h in range(2):
        e(f"v_exp_f32 v{vW+h}, v{vW+h}")
    e(f"s_cmp_eq_u32 s{sN}, {2*NB-1}")
    for h in range(2):
        e(f"v_cvt_pk_bf16_f32 v{vP+h}, v{vW+h}, v{vW+h}")
    for h in range(2):
        e(f"v_and_b32 v{vW+h}, 0xffff0000, v{vP+h}")
    for h in range(2):
        e(f"v_add_f32 v{vL}, v{vL}, v{vW+h}")
    e("s_cbranch_scc1 L_vlast")
    e(f"ds_read_b64 {vr(vWn,2)}, v{vLds}")
    e(f"s_memrealtime s[{sNow}:{sNow+1}]")
    dispatch("L_vb", len(VL))

    def look(k=0):
        for i in range(3):
            e(f"buffer_load_dwordx4 {vr(vR+12*k+4*i,4)}, v{vOff}, s[{sW}:{sW+3}], s{sR+i} offen{p.lflags}")

    def vbody(Wd, last=False):
        for t in range(B):
            h, g, b = t // 16, (t % 16) // 4, t % 4
            A = vA0 if t % 2 == 0 else vA1
            for r in range(4):
                e(f"v_and_b32_dpp v{A+r}, v{vP+h}, v{vMask+r} row_newbcast:{4*b+g} row_mask:0xf bank_mask:0xf")
            if last and t == p.look0:
                look()
            e(f"s_waitcnt vmcnt({B-1-t+(3 if t >= p.look0 and not p.cons else 0) if last else Wd})")
            e("s_nop 0")
            k = vK + 4 * t
            e(f"v_mfma_f32_16x16x32_bf16 {vr(vAcc,4)}, {vr(A,4)}, {vr(k,4)}, {vr(vAcc,4)}")
            if not last:
                issue(sX, sNxt, t)
        issue.cur = None
    vmid = MID if len(VL) > 1 else 0
    vbody(VL[vmid] - 1)
    e.label("L_vdone")
    e("s_waitcnt lgkmcnt(0)")
    if NM > 1:
        newmode()
    e(f"s_add_u32 s{sN}, s{sN}, 1")
    if p.pf & 2:
        e(f"s_cmp_lg_u32 s{sN}, {p.pfat}")
        e("s_cbranch_scc1 L_vtop")
        code_prefetch("b", "L_vlast", "L_end", 1)
    if p.diag == 2:
        for (n, i) in ((33, 6), (34, 7), (63, 8)):
            e(f"s_cmp_lg_u32 s{sN}, {n}")
            e(f"s_cbranch_scc1 L_ds{n}")
            stamp(i)
            e.label(f"L_ds{n}")
    e("s_branch L_vtop")

    if len(KL) > 1:
        for m in range(NM):
            if m != MID:
                e.label(f"L_kb{m}")
                kbody(KL[m] - 1)
                e("s_branch L_kdone")
    if len(VL) > 1:
        for m in range(NM):
            if m != MID:
                e.label(f"L_vb{m}")
                vbody(VL[m] - 1)
                e("s_branch L_vdone")

    def check(k):
        r = vR + 12 * k
        for i in range(3):
            e(f"v_sub_u32 v{vS+i}, v{r+4*i+2}, v{vWl}")
        e(f"v_max3_u32 v{vS}, v{vS}, v{vS+1}, v{vS+2}")
        e(f"v_cmp_lt_u32 vcc, {WIN}, v{vS}")
        e("s_nop 4")
        e(f"s_cbranch_vccz L_final{k}")
    e.c("---------------- last V body (no further loads), publish, combine")
    e.label("L_vlast")
    e(f"s_and_b32 s{sSplit}, s2, 3")
    e(f"s_lshl_b32 s{sT2}, s{sHead}, 12")
    for i in range(3):
        e(f"s_add_u32 s{sTmp}, s{sSplit}, {i+1}")
        e(f"s_and_b32 s{sTmp}, s{sTmp}, 3")
        e(f"s_lshl_b32 s{sTmp}, s{sTmp}, 10")
        e(f"s_add_u32 s{sR+i}, s{sT2}, s{sTmp}")
    for op in ["quad_perm:[1,0,3,2] row_mask:0xf", "quad_perm:[2,3,0,1] row_mask:0xf", "row_half_mirror row_mask:0xf",
               "row_mirror row_mask:0xf", "row_bcast:15 row_mask:0xa", "row_bcast:31 row_mask:0xc"]:
        e(f"v_add_f32_dpp v{vL}, v{vL}, v{vL} {op} bank_mask:0xf")
        e("s_nop 1")
    e(f"v_readlane_b32 s{sL}, v{vL}, 63")
    e(f"s_lshr_b64 s[{sNow}:{sNow+1}], s[{sNow}:{sNow+1}], 8")
    e(f"s_lshl_b32 s{sCur}, s2, 10")
    e(f"v_log_f32 v{vLse}, s{sL}")
    e(f"v_rcp_f32 v{vInv}, s{sL}")
    e(f"v_and_b32 v{vOut}, 0xf0, v{vOff}")
    e(f"v_bfe_u32 v{vT}, v{vLane}, 4, 1")
    e(f"v_lshl_add_u32 v{vOut}, v{vT}, 3, v{vOut}")
    e(f"v_lshrrev_b32 v{vT}, 5, v{vLane}")
    e(f"v_lshl_add_u32 v{vOut}, v{vT}, 2, v{vOut}")
    e(f"v_add_f32 v{vLse}, v{vLse}, v{vMx}")
    e(f"v_lshlrev_b32 v{vT}, 26, v{vLane}")
    e(f"v_add_u32 v{vWl}, s{sTagMid}, v{vT}")
    if p.forcefb:
        e(f"v_add_u32 v{vWl}, 0x100000, v{vWl}")
    e(f"v_add_u32 v{vTag}, s{sNow}, v{vT}")
    e(f"s_mov_b32 s{sLook}, 0")
    e(f"v_mov_b32 v{vU+2}, v{vTag}")
    e(f"v_mov_b32 v{vU+3}, v{vLse}")
    vbody(0, last=True)
    stamp(5)
    e("s_nop 7")
    e(f"v_permlane32_swap_b32 v{vAcc}, v{vAcc+2}")
    e(f"v_permlane32_swap_b32 v{vAcc+1}, v{vAcc+3}")
    e(f"v_mul_f32 v{vU}, v{vAcc}, v{vInv}")
    e(f"v_mul_f32 v{vU+1}, v{vAcc+1}, v{vInv}")
    if p.pubfirst:
        e(f"buffer_store_dwordx4 {vr(vU,4)}, v{vOff}, s[{sW}:{sW+3}], s{sCur} offen{p.rflags}")
        look(1)
        e("s_waitcnt vmcnt(4)")
        check(0)
    else:
        e("s_waitcnt vmcnt(0)")
        check(0)
        e(f"buffer_store_dwordx4 {vr(vU,4)}, v{vOff}, s[{sW}:{sW+3}], s{sCur} offen{p.rflags}")
        look(1)
    e(f"s_mov_b32 s{sLook}, 1")
    if p.slp:
        e(f"s_sleep {p.slp}")
        look(2)
        e(f"s_sleep {p.slp}")
        look(0)
        if p.diag == 1:
            stamp(7)
        e("s_waitcnt vmcnt(6)")
        if p.diag == 1:
            stamp(8)
        check(1)
        e("s_waitcnt vmcnt(3)")
        check(2)
        e("s_waitcnt vmcnt(0)")
        look(1)
        check(0)
    else:
        if p.diag == 1:
            stamp(7)
        e("s_waitcnt vmcnt(0)")
        if p.diag == 1:
            stamp(8)
        e.c("own record is acknowledged: this look is ordered after it")
        look(2)
        check(1)
    e(f"s_lshl_b32 s{sTmp}, s{sHead}, 2")
    e(f"v_mov_b32 v{vT}, 1")
    e(f"v_mov_b32 v{vT2}, s{sTmp}")
    e(f"s_mov_b32 s{sLook}, 2")
    fk = 1 if p.slp else 2
    if p.lateatom:
        e("s_waitcnt vmcnt(0)")
        check(fk)
    e.c("fallback: count arrivals; the fourth one combines without looking at tags")
    e("s_mov_b64 exec, 1")
    e(f"buffer_atomic_add v{vT}, v{vT2}, s[{sD}:{sD+3}], 0 offen sc0")
    e("s_mov_b64 exec, -1")
    if not p.lateatom:
        e("s_waitcnt vmcnt(1)")
        check(fk)
    e("s_waitcnt vmcnt(0)")
    e(f"v_readfirstlane_b32 s{sIdx}, v{vT}")
    stamp(9)
    e(f"s_cmp_lg_u32 s{sIdx}, {NS-1}")
    e("s_cbranch_scc1 L_fin")
    look(0)
    e(f"s_mov_b32 s{sLook}, 3")
    e("s_waitcnt vmcnt(0)")
    F = vA0
    for k in range(3):
        r = vR + 12 * k
        e.label(f"L_final{k}")
        stamp(10)
        e(f"v_max3_f32 v{vT2}, v{vLse}, v{r+3}, v{r+7}")
        e(f"v_max_f32 v{vT2}, v{vT2}, v{r+11}")
        e(f"v_sub_f32 v{F}, v{vLse}, v{vT2}")
        for i in range(3):
            e(f"v_sub_f32 v{F+1+i}, v{r+4*i+3}, v{vT2}")
        for i in range(4):
            e(f"v_exp_f32 v{F+i}, v{F+i}")
        e(f"s_lshl_b32 s{sTmp}, s{sHead}, 8")
        e(f"v_add_f32 v{vT2}, v{F}, v{F+2}")
        e(f"v_add_f32 v{vAl}, v{F+1}, v{F+3}")
        e(f"v_add_f32 v{vT2}, v{vT2}, v{vAl}")
        e(f"v_rcp_f32 v{vT2}, v{vT2}")
        for q in range(2):
            e(f"v_mul_f32 v{vA1+q}, v{vU+q}, v{F}")
        for i in range(3):
            for q in range(2):
                e(f"v_mul_f32 v{r+4*i+q}, v{r+4*i+q}, v{F+1+i}")
        for q in range(2):
            e(f"v_add_f32 v{vA1+q}, v{vA1+q}, v{r+4+q}")
            e(f"v_add_f32 v{r+q}, v{r+q}, v{r+8+q}")
        for q in range(2):
            e(f"v_add_f32 v{vA1+q}, v{vA1+q}, v{r+q}")
        for q in range(2):
            e(f"v_mul_f32 v{vA1+q}, v{vA1+q}, v{vT2}")
        e(f"v_cvt_pk_bf16_f32 v{vA1}, v{vA1}, v{vA1+1}")
        e(f"buffer_store_dword v{vA1}, v{vOut}, s[{sO}:{sO+3}], s{sTmp} offen{p.oflags}")
        if p.diag:
            e("s_waitcnt vmcnt(0)")
            stamp(11)
        if k != 2:
            e("s_branch L_fin")
    e.label("L_fin")
    if p.diag:
        e("s_waitcnt lgkmcnt(0) vmcnt(0)")
        e("s_mov_b64 exec, 1")
        e(f"s_lshl_b32 s{sTmp}, s2, 6")
        e(f"s_add_u32 s{sTmp}, s{sTmp}, 0x100000")
        e(f"s_mov_b32 s{sW+2}, 0x1000000")
        e(f"v_mov_b32 v{vT}, 0")
        for i in range(12):
            e(f"v_mov_b32 v{vK+i}, s{60+2*i}")
        e(f"s_getreg_b32 s58, hwreg(HW_REG_XCC_ID)")
        e(f"v_mov_b32 v{vK+12}, s58")
        e(f"v_mov_b32 v{vK+13}, s{sLook}")
        e(f"v_mov_b32 v{vK+14}, s2")
        e(f"v_mov_b32 v{vK+15}, s{sMode}")
        for i in range(4):
            e(f"buffer_store_dwordx4 {vr(vK+4*i,4)}, v{vT}, s[{sW}:{sW+3}], s{sTmp} offen offset:{16*i}")
    e.label("L_end")

    lds = max(16384 + 1024, p.lds)
    nv = nvgpr
    acc = (nv + 3) // 4 * 4
    out = HEADER
    out += f"; @launch grid=({NWG},1,1) block=(64,1,1) lds={lds}\n"
    out += f""".amdgcn_target "amdgcn-amd-amdhsa--gfx950"
.text
.globl {NAME}_kernel
.p2align 8
.type {NAME}_kernel,@function
{NAME}_kernel:
"""
    out += e.text()
    out += f"""s_endpgm
.section .rodata,"a"
.p2align 6
.amdhsa_kernel {NAME}_kernel
  .amdhsa_next_free_vgpr {nv}
  .amdhsa_next_free_sgpr 96
  .amdhsa_accum_offset {acc}
  .amdhsa_group_segment_fixed_size 0
  .amdhsa_kernarg_size 48
  .amdhsa_user_sgpr_count 2
  .amdhsa_user_sgpr_kernarg_segment_ptr 1
  .amdhsa_system_sgpr_workgroup_id_x 1
.end_amdhsa_kernel
"""
    return out

if __name__ == "__main__":
    il = lambda s: [int(x) for x in s.split(",")] if s else []
    ap = argparse.ArgumentParser()
    ap.add_argument("--klev", type=il, default=[20])
    ap.add_argument("--vlev", type=il, default=[20])
    ap.add_argument("--mid", type=int, default=0)
    ap.add_argument("--texp", type=float, default=70.0)
    ap.add_argument("--toff", type=float, default=1.0)
    ap.add_argument("--shift", type=int, default=9)
    ap.add_argument("--flags", default="nt")
    ap.add_argument("--lds", type=int, default=90000)
    ap.add_argument("--forcefb", type=int, default=0)
    ap.add_argument("--slp", type=int, default=4)
    ap.add_argument("--pubfirst", type=int, default=1)
    ap.add_argument("--cap", type=float, default=0.0)
    ap.add_argument("--pro", type=int, default=0)
    ap.add_argument("--oflags", default="")
    ap.add_argument("--rflags", default=" sc1")
    ap.add_argument("--lflags", default=" sc1")
    ap.add_argument("--il", type=int, default=0)
    ap.add_argument("--gl", type=int, default=32)
    ap.add_argument("--perm", type=il, default=[0, 1, 2, 3])
    ap.add_argument("--strips", type=int, default=0)
    ap.add_argument("--ss", type=int, default=32)
    ap.add_argument("--sg", type=int, default=1)
    ap.add_argument("--map", type=il, default=[])
    ap.add_argument("--xr", type=il, default=[])
    ap.add_argument("--vid", type=int, default=0)
    ap.add_argument("--rows", type=il, default=[8, 9])
    ap.add_argument("--numa", type=int, default=0)
    ap.add_argument("--cons", type=int, default=0)
    ap.add_argument("--pf", type=int, default=7)
    ap.add_argument("--pfn", type=int, default=2)
    ap.add_argument("--pfat", type=int, default=60)
    ap.add_argument("--lateatom", type=int, default=0)
    ap.add_argument("--look0", type=int, default=0)
    ap.add_argument("--touch", type=int, default=0)
    ap.add_argument("--touchsh", type=int, default=16)
    ap.add_argument("--diag", type=int, default=0)
    ap.add_argument("-o", default="cdna_kernels/" + NAME + ".s")
    p = ap.parse_args()
    p.flags = (" " + p.flags.replace(",", " ")) if p.flags else ""
    open(p.o, "w").write(gen(p))
```
